```python
import torch

def _softmax(x, axis=-1):
    return torch.softmax(x, dim=axis)
def _gelu(x):
    return torch.nn.functional.gelu(x, approximate="tanh")
def _silu(x):
    return torch.nn.functional.silu(x)
def _sigmoid(x):
    return torch.sigmoid(x)
def _layernorm(x, axis=-1, eps=1e-5):
    m = x.mean(dim=axis, keepdim=True)
    v = x.var(dim=axis, keepdim=True, unbiased=False)
    return (x - m) / torch.sqrt(v + eps)
def _scatter_add(tgt, idx, src, axis=0):
    return tgt.clone().index_add_(axis, idx, src)
def _segment_sum(src, seg, n):
    out = torch.zeros((n,) + src.shape[1:], dtype=src.dtype)
    return out.index_add_(0, seg, src)
def _pad(x, pw):
    flat = tuple(v for pair in reversed(pw) for v in pair)
    return torch.nn.functional.pad(x, flat)

kernel_name = 'sequential_preLN__sliding_block_cached__glu_gated_geglu__decode'

def setup_inputs():

    _w = (lambda a: (lambda t: t.to(torch.bfloat16) if t.is_floating_point() else t)(torch.as_tensor(a)))
    def _A_setup():
        B, Sq, D = 1, 1, 576
        Hq, Hkv, Sk, Dh = 32, 16, 65536, 128
        assert Hq % Hkv == 0, (Hq, Hkv)
        return {
            "x": _w((lambda *s: torch.randn(*s, dtype=torch.bfloat16) * 0.05)(B, Sq, D)),
            "k_cache": _w((lambda *s: torch.randn(*s, dtype=torch.bfloat16) * 1.6)(B, Hkv, Sk, Dh)),
            "v_cache": _w((lambda *s: torch.randn(*s, dtype=torch.bfloat16) * 0.8)(B, Hkv, Sk, Dh)),
            "wq": _w((lambda *s: torch.randn(*s, dtype=torch.bfloat16) * 1.6)(D, Hq * Dh) * (D ** -0.5)),
            "wo": _w((lambda *s: torch.randn(*s, dtype=torch.bfloat16) * 0.8)(Hq * Dh, D) * ((Hq * Dh) ** -0.5)),
        }
    _A_in = _A_setup()

    def _B_setup():
        B, S, Dm, Df = 1, 1, 576, 4608
        return {
            "x": _w((lambda *s: torch.randn(*s, dtype=torch.bfloat16) * 0.05)(B, S, Dm)),
            "w_gate": _w((lambda *s: torch.randn(*s, dtype=torch.bfloat16) * 0.4)(Dm, Df) * (Dm ** -0.5)),
            "w_up": _w((lambda *s: torch.randn(*s, dtype=torch.bfloat16) * 0.4)(Dm, Df) * (Dm ** -0.5)),
            "w_down": _w((lambda *s: torch.randn(*s, dtype=torch.bfloat16) * 0.4)(Df, Dm) * (Df ** -0.5)),
        }
    _B_in = _B_setup()

    return {
        "A_x": _A_in["x"],
        "A_k_cache": _A_in["k_cache"],
        "A_v_cache": _A_in["v_cache"],
        "A_wq": _A_in["wq"],
        "A_wo": _A_in["wo"],
        "B_x": _B_in["x"],
        "B_w_gate": _B_in["w_gate"],
        "B_w_up": _B_in["w_up"],
        "B_w_down": _B_in["w_down"],
    }

def reference(A_x, A_k_cache, A_v_cache, A_wq, A_wo, B_x, B_w_gate, B_w_up, B_w_down):
    def _A_ref(x, k_cache, v_cache, wq, wo):
        B, Sq, D = x.shape
        Hq, Dh = 32, 128
        Hkv, Sk = k_cache.shape[1], k_cache.shape[2]
        W = min(4096, max(256, Sk // 4))
        rep = Hq // Hkv
        q = (lambda x, *d: x.permute(*d))((x @ wq).reshape(B, Sq, Hq, Dh), 0, 2, 1, 3)
        k = (lambda x, n, axis: torch.repeat_interleave(x, n, dim=axis))(k_cache[:, :, Sk - W:, :], rep, axis=1)
        v = (lambda x, n, axis: torch.repeat_interleave(x, n, dim=axis))(v_cache[:, :, Sk - W:, :], rep, axis=1)
        scores = torch.einsum("bhqd,bhkd->bhqk", q, k) * (Dh ** -0.5)
        p = _softmax(scores, axis=-1)
        o = torch.einsum("bhqk,bhkd->bhqd", p, v)
        return (lambda x, *d: x.permute(*d))(o, 0, 2, 1, 3).reshape(B, Sq, Hq * Dh) @ wo

    def _B_ref(x, w_gate, w_up, w_down):
        g = torch.einsum("bsd,df->bsf", x, w_gate)
        u = torch.einsum("bsd,df->bsf", x, w_up)
        h = _gelu(g) * u
        return torch.einsum("bsf,fd->bsd", h, w_down)

    x = A_x
    h = x + _A_ref(_layernorm(x, axis=-1), A_k_cache, A_v_cache, A_wq, A_wo)
    h2 = h + _B_ref(_layernorm(h, axis=-1), B_w_gate, B_w_up, B_w_down)
    return h2
```

```python
import re

KD = """
.amdhsa_kernel {name}
  .amdhsa_next_free_vgpr {vgpr}
  .amdhsa_next_free_sgpr {sgpr}
  .amdhsa_accum_offset {accum}
  .amdhsa_group_segment_fixed_size 0
  .amdhsa_kernarg_size 96
  .amdhsa_user_sgpr_count 2
  .amdhsa_user_sgpr_kernarg_segment_ptr 1
  .amdhsa_system_sgpr_workgroup_id_x 1
.end_amdhsa_kernel
"""

REG = re.compile(r"^(v|s)(\d+)$|^(v|s)\[(\d+):(\d+)\]$")
def regs(tok):
    tok = tok.strip()
    if tok.startswith("-"): tok = tok[1:]
    if tok.startswith("abs(") and tok.endswith(")"): tok = tok[4:-1]
    if tok.startswith("|") and tok.endswith("|"): tok = tok[1:-1]
    if tok == "vcc": return ["vcc_lo", "vcc_hi"]
    if tok in ("vcc_lo", "vcc_hi", "m0"): return [tok]
    if tok == "exec": return ["exec"]
    m = REG.match(tok)
    if not m: return []
    if m.group(1): return [m.group(1) + m.group(2)]
    return [m.group(3) + str(i) for i in range(int(m.group(4)), int(m.group(5)) + 1)]

TRANS = ("v_exp_f32", "v_log_f32", "v_rcp_f32", "v_rsq_f32", "v_sqrt_f32", "v_sin_f32", "v_cos_f32")
class Ins:
    def __init__(self, text):
        self.text = text
        t = text.split(";")[0].strip()
        self.is_label = t.endswith(":")
        self.is_dir = t.startswith(".")
        if self.is_label or self.is_dir or not t:
            self.op = ""; self.ops = []; self.w = set(); self.r = set(); self.kind = "none"; return
        parts = t.split(None, 1)
        self.op = parts[0]
        rest = parts[1] if len(parts) > 1 else ""
        ops = []; cur = ""; d = 0
        for ch in rest:
            if ch == "[": d += 1
            if ch == "]": d -= 1
            if ch == "," and d == 0: ops.append(cur.strip()); cur = ""
            else: cur += ch
        if cur.strip(): ops.append(cur.strip())
        self.mods = ""
        if ops:
            sp = ops[-1].split(None, 1)
            if len(sp) > 1 and not ops[-1].startswith("hwreg"):
                ops[-1] = sp[0]; self.mods = sp[1]
        self.ops = ops
        op = self.op
        self.dpp = "_dpp" in op or "row_" in self.mods or "quad_perm" in self.mods
        R = lambda k: set(x for o in k for x in regs(o))
        w = set(); r = set()
        if op.startswith("v_mfma"):
            self.kind = "mfma"; w = R(ops[:1]); r = R(ops[1:]); self.srcC = R(ops[3:4]); self.srcAB = R(ops[1:3])
        elif op.startswith("v_cmp"):
            self.kind = "valu"; w = R(ops[:1]); r = R(ops[1:])
        elif op.startswith("v_readfirstlane") or op.startswith("v_readlane"):
            self.kind = "valu"; w = R(ops[:1]); r = R(ops[1:])
        elif op.startswith("v_permlane") and "swap" in op:
            self.kind = "valu"; w = R(ops[:2]); r = R(ops[:2])
        elif op.startswith("v_"):
            self.kind = "valu"; w = R(ops[:1]); r = R(ops[1:])
            if op.startswith("v_fmac") or op.startswith("v_dot2c") or self.dpp or op.startswith("v_writelane"): r |= w
            if op.startswith("v_cndmask") and len(ops) == 3: r |= {"vcc_lo", "vcc_hi"}
            if op.startswith("v_add_co") or op.startswith("v_addc_co") or op.startswith("v_sub_co"):
                w = R(ops[:2]); r = R(ops[2:])
        elif op.startswith("ds_"):
            self.kind = "ds"
            if op.startswith("ds_read") or op.startswith("ds_bpermute") or op.startswith("ds_swizzle") or "rtn" in op:
                w = R(ops[:1]); r = R(ops[1:])
            else:
                r = R(ops)
        elif op.startswith("buffer_") or op.startswith("global_"):
            self.kind = "vmem"
            self.lds = " lds" in (" " + self.mods)
            if ("load" in op) and not self.lds:
                w = R(ops[:1]); r = R(ops[1:])
            elif "atomic" in op and "sc0" in self.mods:
                w = R(ops[:1]); r = R(ops)
            else:
                r = R(ops)
            if self.lds: r |= {"m0"}
        elif op.startswith("s_"):
            self.kind = "salu"
            if op.startswith(("s_cmp", "s_bitcmp", "s_cbranch", "s_branch", "s_waitcnt", "s_nop", "s_barrier", "s_endpgm", "s_sleep", "s_setprio")):
                r = R(ops)
            else:
                w = R(ops[:1]); r = R(ops[1:])
                if "saveexec" in op: w |= {"exec"}; r |= {"exec"}
        else:
            self.kind = "other"
        self.w = w; self.r = r
    def states(self):
        if self.kind == "none": return 0
        if self.op == "s_nop": return int(self.ops[0], 0) + 1
        return 1

def need(p, c):
    n = 0
    pv = set(x for x in p.w if x[0] == "v" and x[1:].isdigit())
    ps = set(x for x in p.w if not (x[0] == "v" and x[1:].isdigit()))
    if p.kind == "valu":
        if pv & c.r:
            if c.kind == "valu" and c.dpp: n = max(n, 2)
            if c.op.startswith("v_permlane"): n = max(n, 2)
            if c.op.startswith(("v_readfirstlane", "v_readlane")): n = max(n, 1)
            if c.kind == "mfma": n = max(n, 2)
            if p.op.replace("_e32", "").replace("_e64", "") in TRANS and c.kind in ("valu", "mfma"): n = max(n, 1)
        if pv & c.w and c.op.startswith("v_permlane"): n = max(n, 2)
        if ps & c.r:
            if c.kind in ("valu", "mfma"): n = max(n, 2)
            if c.op.startswith(("v_readlane", "v_writelane")): n = max(n, 4)
            if c.kind == "vmem": n = max(n, 5)
            if c.kind == "salu": n = max(n, 1)
    if p.kind == "mfma":
        passes = 8 if "32x32" in p.op else 4
        big = {4: 8, 8: 12}[passes]
        if c.kind == "mfma":
            if pv & c.srcAB: n = max(n, big)
            if pv & c.srcC and c.srcC != pv: n = max(n, big - 2)
            if pv & c.w and c.w != pv: n = max(n, big - 2)
        else:
            if pv & (c.r | c.w): n = max(n, big)
        if c.kind == "valu" and (p.srcC & c.w): n = max(n, {4: 3, 8: 7}[passes])
    if p.kind == "salu" and "m0" in p.w and c.kind == "vmem" and getattr(c, "lds", False): n = max(n, 1)
    if p.kind == "salu" and "m0" in p.w and c.kind == "ds" and "addtid" in c.op: n = max(n, 1)
    if p.kind == "vmem" and "store" in p.op and ("x4" in p.op or "x3" in p.op):
        data = set(regs(p.ops[0])) if p.op.startswith("buffer") else set(regs(p.ops[1]))
        if data & c.w: n = max(n, 2 if c.kind in ("valu", "mfma") else 1)
    return n

def pad(lines, window=14):
    ins = [Ins(l) for l in lines]
    out = []
    hist = []
    nins = 0
    for x in ins:
        if x.kind == "none":
            out.append(x); continue
        req = 0; dist = 0
        for p in reversed(hist):
            k = need(p, x)
            if k > dist: req = max(req, k - dist)
            dist += p.states()
            if dist >= window: break
        while req > 0:
            k = min(req, 16)
            nop = Ins(f"  s_nop {k-1}")
            out.append(nop); hist.append(nop); req -= k; nins += 1
        out.append(x); hist.append(x)
        if len(hist) > 40: hist = hist[-40:]
    return [o.text for o in out], nins

class Asm:
    def __init__(self):
        self.L = []
        self.nlab = 0
    def __call__(self, s):
        for line in s.split("\n"):
            line = line.strip()
            if not line: continue
            self.L.append(line if line.endswith(":") or line.startswith(";") else "  " + line)
    def label(self, base="L"):
        self.nlab += 1
        return f"{base}_{self.nlab}"
    def text(self, autopad=True):
        if autopad:
            l, n = pad(self.L)
            return "\n".join(l) + "\n"
        return "\n".join(self.L) + "\n"
```

```python
import sys
from asmb import Asm, KD

NAME = "sequential_preLN__sliding_block_cached__glu_gated_geglu__decode_kernel"

L_WQ, L_K, L_V, L_SCR = 0, 18432, 83968, 149504
LDS_BYTES = 163840
O_PROG = 0
O_FL = 256
F_KFREE, F_VFREE, F_QRDY, F_MAXR, F_PRDY, F_RED, F_ST, F_LN2, F_HH = [O_FL + 4*k for k in range(9)]
O_LN1 = 512
O_Q = 1664
O_MX = 2176
O_LS = 2208
O_P = 2304
O_LN2 = 3328
O_RED = 4480
O_STAT = 5504
O_HH = 5568
W_EPOCH = 0
W_A = 0x1000
W_B = 0x20000
W_ML = 0x60000
W_C = 0x70000
W_E = 0x78000
W_D = 0x80000
W_SIZE = 0x100000
W_STAMP = 0x100000
TAG_INC = 0x9E3779B9
SCALE = 0x3DB504F3
LOG2E = 0x3FB8AA3B

class Cfg:
    W = 24
    WF = 32
    WS = 40
    nt = True
    debug = False
    budget = 60000
    prefetch_code = True
    def __init__(self, **k):
        for a, b in k.items(): setattr(self, a, b)

def gen(cfg):
    a = Asm()
    ntf = " nt" if cfg.nt else ""
    nstamp = [0]
    def stamp(k):
        if cfg.debug:
            a(f"s_memrealtime s[{72+2*k}:{73+2*k}]")
    def srd(d, p, size):
        a(f"s_mov_b32 s{d}, s{p}"); a(f"s_mov_b32 s{d+1}, s{p+1}")
        a(f"s_mov_b32 s{d+2}, {size}"); a(f"s_mov_b32 s{d+3}, 0x20000")
    def spin_tail(L):
        a("s_sub_u32 s50, s50, 1")
        a(f"s_cbranch_scc0 {L}")
        a("s_mov_b32 s50, 0")
    def wait_flag(off, n, vt=15, signed=False):
        L = a.label("Lw")
        a(f"{L}:")
        a(f"ds_read_b32 v{vt}, v4 offset:{off}")
        a("s_waitcnt lgkmcnt(0)")
        a(f"v_readfirstlane_b32 s51, v{vt}")
        a(f"s_cmp_ge_i32 s51, {n}")
        a(f"s_cbranch_scc1 {L}d")
        spin_tail(L)
        a(f"{L}d:")
    def arrive(off):
        a("s_mov_b64 exec, 1")
        a(f"ds_add_u32 v4, v5 offset:{off}")
        a("s_mov_b64 exec, -1")
    def row_red(op, v, steps=(8, 4, 2, 1)):
        for s in steps:
            a(f"{op}_dpp v{v}, v{v}, v{v} row_ror:{s} row_mask:0xf bank_mask:0xf")
    def xrow_red(op, v, t):
        a(f"v_mov_b32 v{t}, v{v}"); a(f"v_permlane16_swap_b32 v{v}, v{t}"); a(f"{op} v{v}, v{v}, v{t}")
        a(f"v_mov_b32 v{t}, v{v}"); a(f"v_permlane32_swap_b32 v{v}, v{t}"); a(f"{op} v{v}, v{v}, v{t}")
    def all_red(op, v, t):
        row_red(op, v); xrow_red(op, v, t)
    def rnd1(v, t):
        a(f"v_cvt_pk_bf16_f32 v{t}, v{v}, v{v}"); a(f"v_lshlrev_b32 v{v}, 16, v{t}")
    def rnd2(x, y, t):
        a(f"v_cvt_pk_bf16_f32 v{t}, v{x}, v{y}"); a(f"v_lshlrev_b32 v{x}, 16, v{t}"); a(f"v_and_b32 v{y}, 0xffff0000, v{t}")
    def pack_gran(d, q):
        a(f"v_perm_b32 v{d}, v{q}, v{q+1}, s60")
        a(f"v_perm_b32 v{d+1}, v{q+2}, v{q+1}, s61")
        a(f"v_perm_b32 v{d+2}, v{q+3}, v{q+1}, s62")
        a(f"v_mov_b32 v{d+3}, v6")
    def unpack_b(dst, gq):
        a(f"v_perm_b32 v{dst}, v{gq+2}, v{gq+1}, s63")
        a(f"v_perm_b32 v{dst}, v{dst}, v{gq}, s64")
    def tagcheck(grs, acc, L):
        a(f"v_xor_b32 v{acc}, v{grs[0]+3}, v6")
        for gq in grs[1:]:
            a(f"v_bitop3_b32 v{acc}, v{gq+3}, v6, v{acc} bitop3:0xbe")
        a(f"v_cmp_ne_u32 vcc, 0, v{acc}")
        a(f"s_cbranch_vccz {L}d")
        spin_tail(L)
        a(f"{L}d:")

    if cfg.debug:
        for k in range(72, 98): a(f"s_mov_b32 s{k}, 0")
    stamp(0)
    a("s_cmp_ge_u32 s2, 256"); a("s_cbranch_scc1 L_end")
    a("s_load_dwordx16 s[4:19], s[0:1], 0")
    a("s_load_dwordx8 s[20:27], s[0:1], 64")
    a("v_lshrrev_b32 v2, 6, v0")
    a("v_and_b32 v1, 63, v0")
    a("s_and_b32 s28, s2, 7")
    a("v_readfirstlane_b32 s3, v2")
    a("s_lshr_b32 s29, s2, 3")
    a("s_lshr_b32 s30, s29, 4"); a("s_lshl_b32 s31, s28, 1"); a("s_add_u32 s30, s30, s31")
    a("s_and_b32 s31, s29, 15")
    a(f"s_mov_b32 s50, {cfg.budget}")
    a(f"v_mov_b32 v4, {L_SCR}")
    a("s_cmp_eq_u32 s3, 0"); a("s_cbranch_scc0 L_compute")

    a("s_setprio 3")
    a("v_mov_b32 v6, 0"); a("v_mov_b32 v7, 0")
    a("v_lshl_add_u32 v5, v1, 3, v4")
    a("ds_write_b64 v5, v[6:7]")
    a("v_lshrrev_b32 v2, 3, v1"); a("v_and_b32 v3, 7, v1")
    a("v_bfe_u32 v8, v2, 1, 2"); a("v_lshlrev_b32 v8, 1, v8"); a("v_xor_b32 v3, v3, v8"); a("v_lshlrev_b32 v3, 4, v3")
    a("v_lshl_add_u32 v10, v2, 13, v3")
    a("v_mul_u32_u24 v8, 1152, v2"); a("v_add_u32 v11, v8, v3")
    a("v_xor_b32 v19, 64, v11")
    a("v_mul_u32_u24 v8, 9216, v2"); a("v_add_u32 v18, v8, v3")
    a("v_lshrrev_b32 v2, 4, v1"); a("v_and_b32 v3, 15, v1")
    a("v_xor_b32 v8, v3, v2"); a("v_lshlrev_b32 v8, 4, v8"); a("v_lshl_add_u32 v12, v2, 8, v8")
    a("v_xor_b32 v13, 64, v12"); a("v_xor_b32 v14, 0x80, v12"); a("v_xor_b32 v15, 0xc0, v12")
    a("v_lshlrev_b32 v8, 1, v2"); a("v_xor_b32 v8, v3, v8"); a("v_lshlrev_b32 v8, 4, v8"); a("v_lshl_add_u32 v16, v2, 8, v8")
    a("v_xor_b32 v17, 0x80, v16")
    a("v_lshl_add_u32 v21, v1, 2, v4")
    a(f"v_mov_b32 v20, {-(cfg.W-1)}")
    a("s_lshr_b32 s64, s31, 2"); a(f"s_mul_i32 s64, s64, {144*8192}")
    a("s_and_b32 s65, s31, 3"); a("s_lshl_b32 s65, s65, 7"); a("s_add_u32 s64, s64, s65")
    a("s_lshl_b32 s65, s30, 9"); a("s_add_u32 s64, s64, s65")
    a("s_lshl_b32 s65, s30, 24"); a(f"s_add_u32 s65, s65, {61440*256}")
    a("s_lshl_b32 s66, s31, 16"); a("s_add_u32 s65, s65, s66")
    a("s_waitcnt lgkmcnt(0)")
    stamp(1)
    st = dict(W=cfg.W)
    def pub():
        a("v_add_u32 v20, 1, v20"); a("ds_write_b32 v21, v20")
    def issue(voff, soff, imm=0, wait=True):
        a(f"buffer_load_dwordx4 v{voff}, s[44:47], {soff} offen offset:{imm}{ntf} lds")
        if wait:
            a(f"s_waitcnt vmcnt({st['W']-1})"); pub()
    def loop_begin(n):
        L = a.label("Ll"); a(f"s_mov_b32 s67, {n}"); a(f"{L}:"); return L
    def loop_end(L):
        a("s_sub_u32 s67, s67, 1"); a("s_cmp_lg_u32 s67, 0"); a(f"s_cbranch_scc1 {L}")
    def widen(newW, voffs):
        pass
    srd(44, 10, 4718592)
    a(f"s_mov_b32 m0, {L_WQ}")
    nfirst = 18
    assert cfg.W - 1 >= nfirst
    L = loop_begin(18)
    issue(10, "s64", wait=False)
    a("v_add_u32 v20, 1, v20")
    a("s_add_u32 m0, m0, 1024"); a(f"s_add_u32 s64, s64, {8*8192}")
    loop_end(L)
    a("s_barrier")
    srd(44, 6, 0x10000000)
    a(f"s_mov_b32 m0, {L_K}"); a("s_mov_b32 s66, s65")
    L = loop_begin(16)
    for q in range(4): issue(12+q, "s66", q*1024)
    a("s_add_u32 m0, m0, 4096"); a("s_add_u32 s66, s66, 4096")
    loop_end(L)
    stamp(2)
    srd(44, 8, 0x10000000)
    a(f"s_mov_b32 m0, {L_V}"); a("s_mov_b32 s66, s65")
    L = loop_begin(16)
    for q in range(4): issue(16+(q & 1), "s66", q*1024)
    a("s_add_u32 m0, m0, 4096"); a("s_add_u32 s66, s66, 4096")
    loop_end(L)
    stamp(3)
    def lwait_flag(off, n):
        L = a.label("Lw")
        a(f"{L}:")
        a(f"ds_read_b32 v22, v4 offset:{off}")
        a("s_waitcnt lgkmcnt(0)")
        a("v_readfirstlane_b32 s51, v22")
        a(f"s_cmp_ge_i32 s51, {n}")
        a(f"s_cbranch_scc1 {L}d")
        spin_tail(L)
        a(f"{L}d:")
    def widen_issue(newW, emit_one):
        for k in range(newW - st['W']): emit_one(False)
        st['W'] = newW
    def drain():
        for k in range(st['W']-2, -1, -1):
            a(f"s_waitcnt vmcnt({k})"); pub()
    a("s_cmp_lt_u32 s29, 18"); a("s_cbranch_scc1 L_ldF")
    a("s_cmp_lt_u32 s29, 27"); a("s_cbranch_scc1 L_ldS")
    st['W'] = cfg.W
    drain()
    a("s_branch L_ldEnd")
    a("L_ldS:")
    st['W'] = cfg.W
    lwait_flag(F_KFREE, 4)
    srd(44, 12, 4718592)
    a("s_sub_u32 s66, s29, 18"); a("s_lshl_b32 s66, s66, 7"); a(f"s_mul_i32 s68, s28, {512*1152}"); a("s_add_u32 s66, s66, s68")
    a(f"s_mov_b32 m0, {L_WQ}")
    def one_wo(wait):
        issue(11, "s66", wait=wait); a("s_add_u32 m0, m0, 1024"); a(f"s_add_u32 s66, s66, {8*1152}")
    ex = cfg.WS - cfg.W
    widen_issue(cfg.WS, one_wo)
    L = loop_begin(64 - ex); one_wo(True); loop_end(L)
    drain()
    a("s_branch L_ldEnd")
    a("L_ldF:")
    st['W'] = cfg.W
    lwait_flag(F_KFREE, 4)
    srd(44, 16, 5308416)
    a("s_bitcmp1_b32 s29, 0"); a("s_cselect_b32 s44, s18, s16"); a("s_cselect_b32 s45, s19, s17")
    a("s_lshr_b32 s68, s29, 1"); a("s_mul_i32 s69, s28, 9"); a("s_add_u32 s68, s68, s69")
    a("s_lshl_b32 s66, s68, 7")
    a(f"s_mov_b32 m0, {L_WQ}")
    def one_m(wait):
        issue(18, "s66", wait=wait); a("s_add_u32 m0, m0, 1024"); a(f"s_add_u32 s66, s66, {8*9216}")
    ex = cfg.WF - cfg.W
    widen_issue(cfg.WF, one_m)
    L = loop_begin(72 - ex); one_m(True); loop_end(L)
    stamp(4)
    lwait_flag(F_VFREE, 4)
    srd(44, 20, 5308416)
    a("s_and_b32 s69, s29, 1"); a("s_lshl_b32 s69, s69, 3"); a("s_lshl_b32 s68, s68, 6"); a("s_add_u32 s68, s68, s69")
    a("s_mul_i32 s66, s68, 1152")
    a(f"s_mov_b32 m0, {L_V}")
    L = loop_begin(9)
    for o in range(4):
        a(f"s_add_u32 s68, s66, {o*16*1152}")
        issue(19 if (o & 1) else 11, "s68")
        a("s_add_u32 m0, m0, 1024")
    a("s_add_u32 s66, s66, 128")
    loop_end(L)
    drain()
    a("L_ldEnd:")
    stamp(5)
    a("s_branch L_fin")

    a("L_compute:")
    a("s_sub_u32 s49, s3, 1")
    a("v_and_b32 v2, 15, v1"); a("v_lshrrev_b32 v3, 4, v1")
    a("v_mov_b32 v5, 1")
    a("s_mov_b32 s60, 0x07060501"); a("s_mov_b32 s61, 0x07060502"); a("s_mov_b32 s62, 0x07060503")
    a("s_mov_b32 s63, 0x04000c0c"); a("s_mov_b32 s64, 0x0706000c")
    a("v_lshlrev_b32 v14, 5, v1")
    a("v_min_u32 v15, 35, v1"); a("s_mul_i32 s51, s49, 36"); a("v_add_u32 v15, s51, v15"); a("v_lshlrev_b32 v18, 3, v15")
    a("s_mul_i32 s52, s28, 5"); a("s_add_u32 s52, s52, s29"); a("s_sub_u32 s52, s52, 27")
    a("s_lshl_b32 s53, s52, 5"); a("v_lshl_add_u32 v19, v3, 3, s53")
    a("s_cmp_ge_u32 s29, 27"); a("s_cselect_b64 s[56:57], -1, 0")
    a("v_cndmask_b32 v18, v18, v19, s[56:57]")
    a("s_waitcnt lgkmcnt(0)")
    srd(32, 26, W_SIZE + (0x100000 if cfg.debug else 0)); srd(36, 4, 1152); srd(40, 22, 1152)
    a("buffer_load_dwordx4 v[20:23], v14, s[36:39], 0 offen")
    a("buffer_load_dwordx4 v[24:27], v14, s[36:39], 0 offen offset:16")
    a("buffer_load_dwordx2 v[16:17], v18, s[36:39], 0 offen")
    a("s_load_dword s48, s[26:27], 0")
    a("s_mov_b32 s71, 0")
    if cfg.prefetch_code:
        a("s_cmp_eq_u32 s29, 31"); a("s_cbranch_scc0 L_nopf")
        a("s_cmp_eq_u32 s49, 3"); a("s_cbranch_scc0 L_nopf")
        a("s_mov_b32 s71, 1")
        a("s_getpc_b64 s[52:53]")
        a("s_and_b32 s52, s52, 0xffffff00")
        a("v_lshlrev_b32 v15, 4, v1")
        a("s_mov_b32 s51, CODE_KB")
        a("L_pfl:")
        a("global_load_dwordx4 v[232:235], v15, s[52:53]")
        a("v_add_u32 v15, 1024, v15")
        a("s_sub_u32 s51, s51, 1"); a("s_cmp_lg_u32 s51, 0"); a("s_cbranch_scc1 L_pfl")
        a("L_nopf:")
    a("s_barrier")
    a("v_lshrrev_b32 v28, 2, v2"); a("v_and_b32 v29, 3, v2")
    a("v_and_b32 v30, 1, v3"); a("v_lshrrev_b32 v31, 1, v3")
    a("v_lshl_add_u32 v32, v30, 2, v28")
    a("v_lshrrev_b32 v33, 1, v32")
    a("v_xor_b32 v33, s49, v33"); a("v_lshlrev_b32 v33, 5, v33")
    a("v_lshl_add_u32 v33, v29, 3, v33")
    a("v_lshl_add_u32 v33, v32, 7, v33")
    a("v_lshl_add_u32 v7, v31, 10, v33")
    a("v_lshl_add_u32 v33, v3, 2, v28")
    a("s_lshl_b32 s51, s49, 1"); a("v_xor_b32 v34, s51, v32"); a("v_lshlrev_b32 v34, 5, v34")
    a("v_lshl_add_u32 v34, v29, 3, v34"); a("v_lshl_add_u32 v34, v33, 8, v34")
    a(f"v_add_u32 v8, {L_V}, v34"); a("v_xor_b32 v34, 32, v34"); a(f"v_add_u32 v9, {L_V}, v34")
    a("v_xor_b32 v33, v3, v2"); a("v_lshlrev_b32 v33, 4, v33"); a("v_lshl_add_u32 v33, v2, 8, v33")
    a("s_lshl_b32 s51, s49, 14"); a(f"s_add_u32 s51, s51, {L_K}")
    for c in range(4):
        if c: a(f"v_xor_b32 v34, {64*c}, v33"); a(f"v_add_u32 v{10+c}, s51, v34")
        else: a("v_add_u32 v10, s51, v33")
    a("s_waitcnt lgkmcnt(0)")
    a(f"s_add_u32 s48, s48, {TAG_INC}")
    a("v_mov_b32 v6, s48")
    a("s_cmp_eq_u32 s71, 0"); a("s_cbranch_scc1 L_xw0")
    a("s_waitcnt vmcnt(CODE_KB)"); a("s_branch L_xw1")
    a("L_xw0:"); a("s_waitcnt vmcnt(0)"); a("L_xw1:")
    stamp(1)
    for k in range(8):
        a(f"v_lshlrev_b32 v{28+2*k}, 16, v{20+k}"); a(f"v_and_b32 v{29+2*k}, 0xffff0000, v{20+k}")
    a("v_add_f32 v44, v28, v29")
    for k in range(2, 16): a(f"v_add_f32 v44, v44, v{28+k}")
    all_red("v_add_f32", 44, 45)
    a("v_mul_f32 v44, 0x3ae38e39, v44")
    a("v_cmp_gt_u32 vcc, 36, v1")
    a("v_sub_f32 v46, v28, v44"); a("v_mul_f32 v45, v46, v46")
    for k in range(1, 16):
        a(f"v_sub_f32 v46, v{28+k}, v44"); a("v_fmac_f32 v45, v46, v46")
    a("v_cndmask_b32 v45, 0, v45, vcc")
    all_red("v_add_f32", 45, 46)
    a("v_mul_f32 v45, 0x3ae38e39, v45")
    rnd1(45, 46); a("v_add_f32 v45, 0x3727c5ac, v45"); rnd1(45, 46)
    a("v_sqrt_f32 v45, v45"); rnd1(45, 46); a("v_rcp_f32 v45, v45")
    rnd1(44, 46)
    for k in range(0, 16, 2):
        a(f"v_sub_f32 v{28+k}, v{28+k}, v44"); a(f"v_sub_f32 v{29+k}, v{29+k}, v44")
        rnd2(28+k, 29+k, 46)
        a(f"v_mul_f32 v{28+k}, v{28+k}, v45"); a(f"v_mul_f32 v{29+k}, v{29+k}, v45")
        a(f"v_cvt_pk_bf16_f32 v{48+k//2}, v{28+k}, v{29+k}")
    a(f"v_add_u32 v14, {O_LN1}, v14"); a("v_add_u32 v14, v14, v4")
    a("s_mov_b32 exec_hi, 15")
    a("ds_write_b128 v14, v[48:51]"); a("ds_write_b128 v14, v[52:55] offset:16")
    a("s_mov_b64 exec, -1")
    a("s_lshr_b32 s51, s31, 2"); a("s_mul_i32 s51, s51, 288"); a(f"s_add_u32 s51, s51, {L_SCR+O_LN1}")
    a("v_lshl_add_u32 v14, v3, 3, s51")
    stamp(2)
    wait_flag(O_PROG, 18)
    for t in range(9): a(f"ds_read_b64 v[{20+2*t}:{21+2*t}], v14 offset:{32*t}")
    for t in range(9): a(f"ds_read_b64_tr_b16 v[{40+2*t}:{41+2*t}], v7 offset:{L_WQ + 2048*t}")
    for r in range(4): a(f"v_mov_b32 v{60+r}, 0")
    a("s_waitcnt lgkmcnt(0)")
    for t in range(9):
        a(f"v_mfma_f32_16x16x16_bf16 v[60:63], v[{40+2*t}:{41+2*t}], v[{20+2*t}:{21+2*t}], v[60:63]")
    a("s_lshl_b32 s51, s30, 2"); a("s_lshr_b32 s52, s31, 2"); a("s_add_u32 s51, s51, s52"); a("s_lshl_b32 s51, s51, 10")
    a("s_and_b32 s52, s31, 3"); a("s_lshl_b32 s52, s52, 8"); a("s_add_u32 s51, s51, s52")
    a("s_lshl_b32 s52, s49, 6"); a("s_add_u32 s51, s51, s52"); a(f"s_add_u32 s51, s51, {W_A}")
    a("v_lshlrev_b32 v14, 4, v3")
    pack_gran(64, 60)
    a("s_mov_b64 exec, 0x0001000100010001") if False else (a("s_mov_b32 exec_lo, 0x00010001"), a("s_mov_b32 exec_hi, 0x00010001"))
    a("buffer_store_dwordx4 v[64:67], v14, s[32:35], s51 offen sc1")
    a("s_mov_b64 exec, -1")
    stamp(3)
    a("s_cmp_eq_u32 s49, 0"); a("s_cbranch_scc0 L_noq")
    a("s_lshl_b32 s51, s30, 12"); a(f"s_add_u32 s51, s51, {W_A}")
    a("v_lshlrev_b32 v14, 4, v1")
    L = a.label("Lg"); a(f"{L}:")
    for kp in range(4): a(f"buffer_load_dwordx4 v[{20+4*kp}:{23+4*kp}], v14, s[32:35], s51 offen offset:{1024*kp} sc1")
    a("s_waitcnt vmcnt(0)")
    tagcheck([20, 24, 28, 32], 36, L)
    for kp in range(4): unpack_b(40+kp, 20+4*kp)
    a("v_add_f32 v20, v20, v24"); a("v_add_f32 v28, v28, v32"); a("v_add_f32 v44, v20, v28")
    a("v_add_f32 v40, v40, v41"); a("v_add_f32 v42, v42, v43"); a("v_add_f32 v45, v40, v42")
    a("v_add_f32 v21, v21, v25"); a("v_add_f32 v29, v29, v33"); a("v_add_f32 v46, v21, v29")
    a("v_add_f32 v22, v22, v26"); a("v_add_f32 v30, v30, v34"); a("v_add_f32 v47, v22, v30")
    a("v_cvt_pk_bf16_f32 v48, v44, v45"); a("v_cvt_pk_bf16_f32 v49, v46, v47")
    a(f"v_lshlrev_b32 v14, 3, v1"); a("v_add_u32 v14, v14, v4")
    a(f"ds_write_b64 v14, v[48:49] offset:{O_Q}")
    arrive(F_QRDY)
    a("L_noq:")
    wait_flag(F_QRDY, 1)
    stamp(4)
    a("v_and_b32 v14, 1, v2"); a("v_lshlrev_b32 v14, 8, v14"); a("v_lshl_add_u32 v14, v3, 4, v14"); a("v_add_u32 v14, v14, v4")
    for c in range(4): a(f"ds_read_b128 v[{128+4*c}:{131+4*c}], v14 offset:{O_Q + 64*c}")
    a("s_lshl_b32 s52, s49, 4"); a("s_add_u32 s52, s52, 34")
    L = a.label("Lw"); a(f"{L}:")
    a(f"ds_read_b32 v15, v4 offset:{O_PROG}"); a("s_waitcnt lgkmcnt(0)"); a("v_readfirstlane_b32 s51, v15")
    a("s_cmp_ge_i32 s51, s52"); a(f"s_cbranch_scc1 {L}d"); spin_tail(L); a(f"{L}d:")
    for t in range(4):
        for c in range(4):
            a(f"ds_read_b128 v[{64+16*t+4*c}:{67+16*t+4*c}], v{10+c} offset:{4096*t}")
    for r in range(16): a(f"v_mov_b32 v{144+r}, 0")
    for t in range(4):
        a(f"s_waitcnt lgkmcnt({min(15, 4*(3-t))})")
        for c in range(4):
            a(f"v_mfma_f32_16x16x32_bf16 v[{144+4*t}:{147+4*t}], v[{64+16*t+4*c}:{67+16*t+4*c}], v[{128+4*c}:{131+4*c}], v[{144+4*t}:{147+4*t}]")
    arrive(F_KFREE)
    for k in range(0, 16, 2):
        x, y = 144+k, 145+k
        rnd2(x, y, 20)
        a(f"v_mul_f32 v{x}, {SCALE:#x}, v{x}"); a(f"v_mul_f32 v{y}, {SCALE:#x}, v{y}")
        rnd2(x, y, 20)
    a("v_max3_f32 v20, v144, v145, v146")
    for k in range(147, 159, 2): a(f"v_max3_f32 v20, v20, v{k}, v{k+1}")
    a("v_max_f32 v20, v20, v159")
    xrow_red("v_max_f32", 20, 21)
    a("v_and_b32 v14, 1, v2"); a("v_lshlrev_b32 v14, 4, v14"); a("v_add_u32 v14, v14, v4")
    a("s_lshl_b32 s51, s49, 2"); a("v_add_u32 v22, s51, v14")
    a("s_mov_b64 exec, 3")
    a(f"ds_write_b32 v22, v20 offset:{O_MX}")
    a("s_mov_b64 exec, -1")
    arrive(F_MAXR)
    wait_flag(F_MAXR, 4)
    a(f"ds_read_b128 v[24:27], v14 offset:{O_MX}")
    a("s_waitcnt lgkmcnt(0)")
    a("v_max3_f32 v23, v24, v25, v26"); a("v_max_f32 v23, v23, v27")
    for k in range(16):
        a(f"v_sub_f32 v{144+k}, v{144+k}, v23"); a(f"v_mul_f32 v{144+k}, {LOG2E:#x}, v{144+k}")
    for k in range(16): a(f"v_exp_f32 v{144+k}, v{144+k}")
    a("v_add_f32 v20, v144, v145")
    for k in range(146, 160): a(f"v_add_f32 v20, v20, v{k}")
    xrow_red("v_add_f32", 20, 21)
    for k in range(8): a(f"v_cvt_pk_bf16_f32 v{24+k}, v{144+2*k}, v{145+2*k}")
    a("v_and_b32 v28, 1, v2") if False else None
    a("v_and_b32 v33, 1, v2"); a("v_lshlrev_b32 v33, 4, v33"); a("v_lshl_add_u32 v33, v3, 5, v33"); a("v_add_u32 v33, v33, v4")
    a("s_lshl_b32 s51, s49, 8"); a("v_add_u32 v34, s51, v33")
    a("s_mov_b32 exec_lo, 0x00030003"); a("s_mov_b32 exec_hi, 0x00030003")
    a(f"ds_write_b128 v34, v[24:27] offset:{O_P}"); a(f"ds_write_b128 v34, v[28:31] offset:{O_P+128}")
    a("s_mov_b64 exec, 3")
    a(f"ds_write_b32 v22, v20 offset:{O_LS}")
    a("s_mov_b64 exec, -1")
    arrive(F_PRDY)
    wait_flag(F_PRDY, 4)
    stamp(5)
    for u in range(8): a(f"ds_read_b128 v[{64+4*u}:{67+4*u}], v33 offset:{O_P + 128*u}")
    a(f"ds_read_b128 v[24:27], v14 offset:{O_LS}")
    for r in range(8): a(f"v_mov_b32 v{112+r}, 0")
    a("s_waitcnt lgkmcnt(0)")
    a("v_add_f32 v24, v24, v25"); a("v_add_f32 v26, v26, v27"); a("v_add_f32 v24, v24, v26")
    for u in range(8):
        wait_flag(O_PROG, 82 + 8*(u+1))
        fb = 96 if (u & 1) == 0 else 104
        a(f"ds_read_b64_tr_b16 v[{fb}:{fb+1}], v8 offset:{8192*u}")
        a(f"ds_read_b64_tr_b16 v[{fb+2}:{fb+3}], v8 offset:{8192*u+4096}")
        a(f"ds_read_b64_tr_b16 v[{fb+4}:{fb+5}], v9 offset:{8192*u}")
        a(f"ds_read_b64_tr_b16 v[{fb+6}:{fb+7}], v9 offset:{8192*u+4096}")
        a("s_waitcnt lgkmcnt(2)")
        a(f"v_mfma_f32_16x16x32_bf16 v[112:115], v[{fb}:{fb+3}], v[{64+4*u}:{67+4*u}], v[112:115]")
        a("s_waitcnt lgkmcnt(0)")
        a(f"v_mfma_f32_16x16x32_bf16 v[116:119], v[{fb+4}:{fb+7}], v[{64+4*u}:{67+4*u}], v[116:119]")
    a("s_lshl_b32 s51, s30, 14"); a("s_and_b32 s52, s31, 3"); a("s_lshl_b32 s52, s52, 10"); a("s_add_u32 s51, s51, s52")
    a("s_lshr_b32 s52, s31, 2"); a("s_lshl_b32 s52, s52, 6"); a("s_add_u32 s51, s51, s52")
    a("s_lshr_b32 s52, s49, 1"); a("s_lshl_b32 s52, s52, 12"); a("s_add_u32 s51, s51, s52")
    a("s_and_b32 s52, s49, 1"); a("s_lshl_b32 s52, s52, 5"); a("s_add_u32 s51, s51, s52"); a(f"s_add_u32 s51, s51, {W_B}")
    a("v_lshlrev_b32 v14, 13, v2"); a("v_lshl_add_u32 v14, v3, 8, v14")
    pack_gran(120, 112); pack_gran(124, 116)
    a("s_mov_b32 exec_lo, 0x00030003"); a("s_mov_b32 exec_hi, 0x00030003")
    a("buffer_store_dwordx4 v[120:123], v14, s[32:35], s51 offen sc1")
    a("buffer_store_dwordx4 v[124:127], v14, s[32:35], s51 offen offset:16 sc1")
    a("s_mov_b64 exec, -1")
    a("s_cmp_eq_u32 s49, 0"); a("s_cbranch_scc0 L_noml")
    a("v_mov_b32 v28, v23"); a("v_mov_b32 v29, v24"); a("v_mov_b32 v30, 0"); a("v_mov_b32 v31, v6")
    a("s_lshl_b32 s51, s30, 9"); a("s_lshl_b32 s52, s31, 4"); a("s_add_u32 s51, s51, s52"); a(f"s_add_u32 s51, s51, {W_ML}")
    a("v_lshlrev_b32 v14, 8, v2")
    a("s_mov_b64 exec, 3")
    a("buffer_store_dwordx4 v[28:31], v14, s[32:35], s51 offen sc1")
    a("s_mov_b64 exec, -1")
    a("L_noml:")
    arrive(F_VFREE)
    stamp(6)
    a("s_cmp_lt_u32 s29, 18"); a("s_cbranch_scc1 L_F")
    a("s_cmp_lt_u32 s29, 27"); a("s_cbranch_scc1 L_S")

    a("s_cmp_eq_u32 s49, 0"); a("s_cbranch_scc0 L_fin")
    a("s_mul_i32 s65, s28, 5"); a("s_add_u32 s65, s65, s29"); a("s_sub_u32 s65, s65, 27")
    a("s_cmp_lt_u32 s65, 36"); a("s_cbranch_scc0 L_fin")
    a("v_and_b32 v14, 7, v2"); a("v_mul_u32_u24 v14, 2304, v14"); a("v_lshl_add_u32 v14, v3, 4, v14")
    a("s_lshl_b32 s66, s65, 6"); a(f"s_add_u32 s66, s66, {W_C}")
    L = a.label("Lg"); a(f"{L}:")
    a("s_sleep 2")
    a("buffer_load_dwordx4 v[20:23], v14, s[32:35], s66 offen sc1")
    a("s_waitcnt vmcnt(0)")
    tagcheck([20], 36, L)
    unpack_b(24, 20)
    a("v_mov_b32 v25, v21"); a("v_mov_b32 v26, v22"); a("v_mov_b32 v23, v20")
    for r in range(4): row_red("v_add_f32", 23+r, (4, 2, 1))
    rnd2(23, 24, 36); rnd2(25, 26, 36)
    a("v_lshlrev_b32 v28, 16, v16"); a("v_and_b32 v29, 0xffff0000, v16"); a("v_lshlrev_b32 v30, 16, v17"); a("v_and_b32 v31, 0xffff0000, v17")
    for r in range(4): a(f"v_add_f32 v{28+r}, v{28+r}, v{23+r}")
    rnd2(28, 29, 36); rnd2(30, 31, 36)
    stamp(7)
    a("v_lshlrev_b32 v14, 4, v1")
    a("s_mul_i32 s66, s65, 9216"); a(f"s_add_u32 s66, s66, {W_D}"); a("s_add_u32 s67, s66, 4096"); a("s_add_u32 s68, s66, 8192")
    L = a.label("Lg"); a(f"{L}:")
    for i9 in range(9):
        a(f"buffer_load_dwordx4 v[{64+4*i9}:{67+4*i9}], v14, s[32:35], s{66+i9//4} offen offset:{1024*(i9%4)} sc1")
    a("s_waitcnt vmcnt(0)")
    tagcheck([64+4*k for k in range(9)], 36, L)
    stamp(8)
    for k in range(9): unpack_b(40+k, 64+4*k)
    for (dst, src) in ((32, lambda k: 64+4*k), (33, lambda k: 40+k), (34, lambda k: 65+4*k), (35, lambda k: 66+4*k)):
        a(f"v_add_f32 v{dst}, v{src(0)}, v{src(1)}")
    for k in range(2, 9):
        a(f"v_add_f32 v32, v32, v{64+4*k}"); a(f"v_add_f32 v33, v33, v{40+k}"); a(f"v_add_f32 v34, v34, v{65+4*k}"); a(f"v_add_f32 v35, v35, v{66+4*k}")
    for s in (8, 4, 2, 1):
        for r in range(4): a(f"v_add_f32_dpp v{32+r}, v{32+r}, v{32+r} row_ror:{s} row_mask:0xf bank_mask:0xf")
    rnd2(32, 33, 36); rnd2(34, 35, 37)
    for r in range(4): a(f"v_add_f32 v{32+r}, v{32+r}, v{28+r}")
    a("v_cvt_pk_bf16_f32 v36, v32, v33"); a("v_cvt_pk_bf16_f32 v37, v34, v35")
    a("s_lshl_b32 s66, s65, 5"); a("v_lshlrev_b32 v14, 3, v3")
    a("s_mov_b32 exec_lo, 0x00010001"); a("s_mov_b32 exec_hi, 0x00010001")
    a("buffer_store_dwordx2 v[36:37], v14, s[40:43], s66 offen")
    a("s_cmp_eq_u32 s65, 0"); a("s_cbranch_scc0 L_noep")
    a("s_mov_b64 exec, 1")
    a("v_mov_b32 v14, 0")
    a(f"buffer_store_dword v6, v14, s[32:35], 0 offen offset:{W_EPOCH} sc1")
    a("L_noep:")
    a("s_mov_b64 exec, -1")
    stamp(9)
    a("s_branch L_fin")

    a("L_S:")
    a("s_lshl_b32 s51, s49, 5"); a("v_xor_b32 v28, s51, v7")
    a("s_lshl_b32 s51, s49, 14"); a("v_add_u32 v28, s51, v28")
    for T in range(1, 4): a(f"v_xor_b32 v{28+T}, {32*T}, v28")
    a("s_lshl_b32 s52, s49, 4"); a("s_add_u32 s52, s52, 162")
    L = a.label("Lw"); a(f"{L}:")
    a(f"ds_read_b32 v15, v4 offset:{O_PROG}"); a("s_waitcnt lgkmcnt(0)"); a("v_readfirstlane_b32 s51, v15")
    a("s_cmp_ge_i32 s51, s52"); a(f"s_cbranch_scc1 {L}d"); spin_tail(L); a(f"{L}d:")
    for T in range(4):
        for ks in range(4):
            b = 64 + 16*T + 4*ks
            a(f"ds_read_b64_tr_b16 v[{b}:{b+1}], v{28+T} offset:{L_WQ + 4096*ks}")
            a(f"ds_read_b64_tr_b16 v[{b+2}:{b+3}], v{28+T} offset:{L_WQ + 4096*ks + 2048}")
    stamp(7)
    a("s_lshl_b32 s65, s28, 2"); a("s_add_u32 s65, s65, s49")
    a("s_lshl_b32 s66, s65, 13"); a(f"s_add_u32 s66, s66, {W_B}"); a("s_add_u32 s67, s66, 4096")
    a("s_lshl_b32 s68, s65, 8"); a(f"s_add_u32 s68, s68, {W_ML}")
    a("v_lshlrev_b32 v14, 4, v1"); a("v_lshlrev_b32 v18, 4, v2")
    for r in range(16): a(f"v_mov_b32 v{192+r}, 0")
    L = a.label("Lg"); a(f"{L}:")
    a("buffer_load_dwordx4 v[128:131], v18, s[32:35], s68 offen sc1")
    for b in range(2):
        for i4 in range(4):
            q = 132 + 16*b + 4*i4
            a(f"buffer_load_dwordx4 v[{q}:{q+3}], v14, s[32:35], s{66+b} offen offset:{1024*i4} sc1")
    a("s_waitcnt vmcnt(0)")
    tagcheck([128] + [132+4*k for k in range(8)], 32, L)
    stamp(8)
    a("v_mov_b32 v32, v128"); row_red("v_max_f32", 32)
    a("v_sub_f32 v33, v128, v32"); a(f"v_mul_f32 v33, {LOG2E:#x}, v33"); a("v_exp_f32 v33, v33")
    a("v_mul_f32 v34, v33, v129"); row_red("v_add_f32", 34)
    a("v_rcp_f32 v34, v34"); a("v_mul_f32 v33, v33, v34")
    for k in range(8): unpack_b(164+k, 132+4*k)
    for b in range(2):
        for i4 in range(4):
            q = 132 + 16*b + 4*i4
            srcs = [q, 164+4*b+i4, q+1, q+2]
            for r in range(4):
                op = "v_mul_f32_dpp" if i4 == 0 else "v_fmac_f32_dpp"
                a(f"{op} v{172+4*b+r}, v33, v{srcs[r]} quad_perm:[{i4},{i4},{i4},{i4}] row_mask:0xf bank_mask:0xf")
    for s in (4, 8):
        for r in range(8): a(f"v_add_f32_dpp v{172+r}, v{172+r}, v{172+r} row_ror:{s} row_mask:0xf bank_mask:0xf")
    for b in range(2):
        a(f"v_cvt_pk_bf16_f32 v{180+2*b}, v{172+4*b}, v{173+4*b}"); a(f"v_cvt_pk_bf16_f32 v{181+2*b}, v{174+4*b}, v{175+4*b}")
    a("s_waitcnt lgkmcnt(0)")
    for ks in range(4):
        b, v = ks >> 1, ks & 1
        B = 184 + 4*(ks & 1)
        for hh in range(2):
            a(f"v_mov_b32_dpp v{B+2*hh}, v{180+2*b} row_newbcast:{2*v+hh} row_mask:0xf bank_mask:0xf")
            a(f"v_mov_b32_dpp v{B+2*hh+1}, v{181+2*b} row_newbcast:{2*v+hh} row_mask:0xf bank_mask:0xf")
        for T in range(4):
            A_ = 64 + 16*T + 4*ks
            a(f"v_mfma_f32_16x16x32_bf16 v[{192+4*T}:{195+4*T}], v[{A_}:{A_+3}], v[{B}:{B+3}], v[{192+4*T}:{195+4*T}]")
    a("s_lshl_b32 s51, s49, 8"); a("v_lshl_add_u32 v14, v3, 4, s51"); a("v_add_u32 v14, v14, v4")
    a("s_mov_b32 exec_lo, 0x00010001"); a("s_mov_b32 exec_hi, 0x00010001")
    for T in range(4): a(f"ds_write_b128 v14, v[{192+4*T}:{195+4*T}] offset:{O_RED + 64*T}")
    a("s_mov_b64 exec, -1")
    arrive(F_RED)
    a("s_cmp_eq_u32 s49, 0"); a("s_cbranch_scc0 L_fin")
    a("v_lshlrev_b32 v14, 4, v2"); a("v_add_u32 v18, v14, v4")
    wait_flag(F_RED, 4)
    for w in range(4): a(f"ds_read_b128 v[{64+4*w}:{67+4*w}], v18 offset:{O_RED + 256*w}")
    a("s_waitcnt lgkmcnt(0)")
    for r in range(4):
        a(f"v_add_f32 v{64+r}, v{64+r}, v{68+r}"); a(f"v_add_f32 v{72+r}, v{72+r}, v{76+r}"); a(f"v_add_f32 v{64+r}, v{64+r}, v{72+r}")
    pack_gran(80, 64)
    a("s_mul_i32 s51, s28, 2304"); a("s_sub_u32 s52, s29, 18"); a("s_lshl_b32 s52, s52, 8"); a("s_add_u32 s51, s51, s52"); a(f"s_add_u32 s51, s51, {W_C}")
    a("s_mov_b64 exec, 0xffff")
    a("buffer_store_dwordx4 v[80:83], v14, s[32:35], s51 offen sc1")
    a("s_mov_b64 exec, -1")
    stamp(9)
    a("s_branch L_fin")

    a("L_F:")
    a("s_and_b32 s65, s29, 1")
    a("s_lshr_b32 s66, s29, 1"); a("s_mul_i32 s67, s28, 9"); a("s_add_u32 s66, s66, s67")
    a(f"v_add_u32 v19, 36864, v7")
    for u in range(18):
        if u % 3 == 0: wait_flag(O_PROG, 146 + 4*(u+3))
        base, off = (7, 4096*u) if u < 9 else (19, 4096*(u-9))
        a(f"ds_read_b64_tr_b16 v[{64+4*u}:{65+4*u}], v{base} offset:{L_WQ + off}")
        a(f"ds_read_b64_tr_b16 v[{66+4*u}:{67+4*u}], v{base} offset:{L_WQ + off + 2048}")
    stamp(7)
    a("v_lshlrev_b32 v14, 1, v18")
    for p in range(8): a(f"s_mov_b32 s{52+0}, 0") if False else None
    a(f"s_mov_b32 s67, {W_C}"); a(f"s_mov_b32 s68, {W_C + 2*2304}"); a(f"s_mov_b32 s69, {W_C + 4*2304}"); a(f"s_mov_b32 s70, {W_C + 6*2304}")
    L = a.label("Lg"); a(f"{L}:")
    for p in range(8):
        a(f"buffer_load_dwordx4 v[{208+4*p}:{211+4*p}], v14, s[32:35], s{67+p//2} offen offset:{2304*(p&1)} sc1")
    a("s_waitcnt vmcnt(0)")
    tagcheck([208+4*p for p in range(8)], 32, L)
    stamp(8)
    for p in range(8): unpack_b(40+p, 208+4*p)
    a("v_add_f32 v32, v208, v212"); a("v_add_f32 v33, v40, v41"); a("v_add_f32 v34, v209, v213"); a("v_add_f32 v35, v210, v214")
    for p in range(2, 8):
        a(f"v_add_f32 v32, v32, v{208+4*p}"); a(f"v_add_f32 v33, v33, v{40+p}"); a(f"v_add_f32 v34, v34, v{209+4*p}"); a(f"v_add_f32 v35, v35, v{210+4*p}")
    rnd2(32, 33, 36); rnd2(34, 35, 37)
    a("v_lshlrev_b32 v28, 16, v16"); a("v_and_b32 v29, 0xffff0000, v16"); a("v_lshlrev_b32 v30, 16, v17"); a("v_and_b32 v31, 0xffff0000, v17")
    for r in range(4): a(f"v_add_f32 v{28+r}, v{28+r}, v{32+r}")
    rnd2(28, 29, 36); rnd2(30, 31, 37)
    a("v_cmp_gt_u32 s[56:57], 36, v1")
    a("v_add_f32 v32, v28, v29"); a("v_add_f32 v33, v30, v31"); a("v_add_f32 v32, v32, v33")
    a("v_cndmask_b32 v32, 0, v32, s[56:57]")
    all_red("v_add_f32", 32, 33)
    a("v_mul_f32 v32, 0x3be38e39, v32")
    a("v_sub_f32 v34, v28, v32"); a("v_mul_f32 v33, v34, v34")
    for r in range(1, 4): a(f"v_sub_f32 v34, v{28+r}, v32"); a("v_fmac_f32 v33, v34, v34")
    a("v_cndmask_b32 v33, 0, v33, s[56:57]")
    all_red("v_add_f32", 33, 34)
    a("s_lshl_b32 s51, s49, 3"); a("v_add_u32 v14, s51, v4")
    a("s_mov_b64 exec, 1")
    a(f"ds_write_b64 v14, v[32:33] offset:{O_STAT}")
    a(f"ds_add_u32 v4, v5 offset:{F_ST}")
    a("s_mov_b64 exec, -1")
    wait_flag(F_ST, 4)
    a(f"ds_read_b128 v[40:43], v4 offset:{O_STAT}"); a(f"ds_read_b128 v[44:47], v4 offset:{O_STAT+16}")
    a("s_waitcnt lgkmcnt(0)")
    a("v_add_f32 v32, v40, v42"); a("v_add_f32 v33, v44, v46"); a("v_add_f32 v32, v32, v33"); a("v_mul_f32 v32, 0.25, v32") if False else None
    a("v_add_f32 v32, v40, v42"); a("v_add_f32 v33, v44, v46"); a("v_add_f32 v32, v32, v33"); a("v_mul_f32 v32, 0x3e800000, v32")
    a("v_sub_f32 v40, v40, v32"); a("v_sub_f32 v42, v42, v32"); a("v_sub_f32 v44, v44, v32"); a("v_sub_f32 v46, v46, v32")
    a("v_mul_f32 v33, v40, v40"); a("v_fmac_f32 v33, v42, v42"); a("v_fmac_f32 v33, v44, v44"); a("v_fmac_f32 v33, v46, v46")
    a("v_add_f32 v41, v41, v43"); a("v_add_f32 v45, v45, v47"); a("v_add_f32 v41, v41, v45")
    a("v_fmac_f32 v41, 0x43100000, v33")
    a("v_mul_f32 v33, 0x3ae38e39, v41")
    rnd1(33, 34); a("v_add_f32 v33, 0x3727c5ac, v33"); rnd1(33, 34)
    a("v_sqrt_f32 v33, v33"); rnd1(33, 34); a("v_rcp_f32 v33, v33")
    rnd1(32, 34)
    for r in range(4): a(f"v_sub_f32 v{40+r}, v{28+r}, v32")
    rnd2(40, 41, 34); rnd2(42, 43, 35)
    for r in range(4): a(f"v_mul_f32 v{40+r}, v{40+r}, v33")
    a("v_cvt_pk_bf16_f32 v44, v40, v41"); a("v_cvt_pk_bf16_f32 v45, v42, v43")
    a("v_lshrrev_b32 v14, 3, v18")
    a("v_lshrrev_b32 v34, 3, v14"); a("v_lshlrev_b32 v34, 6, v34")
    a("v_and_b32 v35, 3, v14"); a("v_lshl_add_u32 v34, v35, 4, v34")
    a("v_bfe_u32 v35, v14, 2, 1"); a("v_lshl_add_u32 v34, v35, 3, v34"); a("v_add_u32 v34, v34, v4")
    a("s_mov_b32 exec_hi, 15")
    a(f"ds_write_b64 v34, v[44:45] offset:{O_LN2}")
    a("s_mov_b64 exec, -1")
    arrive(F_LN2)
    a("v_lshl_add_u32 v14, v3, 4, v4")
    for r in range(4): a(f"v_mov_b32 v{20+r}, 0")
    wait_flag(F_LN2, 4)
    stamp(9)
    for u in range(18): a(f"ds_read_b128 v[{136+4*u}:{139+4*u}], v14 offset:{O_LN2 + 64*u}")
    for u in range(18):
        if u % 2 == 0 or u == 17: a(f"s_waitcnt lgkmcnt({min(15, max(0, 16 - u))})")
        a(f"v_mfma_f32_16x16x32_bf16 v[20:23], v[{64+4*u}:{67+4*u}], v[{136+4*u}:{139+4*u}], v[20:23]")
    a("s_lshl_b32 s67, s66, 8"); a("s_lshl_b32 s68, s49, 5"); a("s_add_u32 s67, s67, s68"); a(f"s_add_u32 s67, s67, {W_E}")
    a("s_lshl_b32 s68, s65, 7"); a("s_add_u32 s69, s67, s68")
    a("s_xor_b32 s68, s68, 128"); a("s_add_u32 s70, s67, s68")
    a("v_and_b32 v14, 1, v3"); a("v_lshlrev_b32 v14, 4, v14")
    rnd2(20, 21, 24); rnd2(22, 23, 25)
    pack_gran(24, 20)
    a("s_cmp_eq_u32 s65, 0")
    a("s_cselect_b32 exec_lo, 0, 0x00010001"); a("s_cselect_b32 exec_hi, 0x00010001, 0")
    a("buffer_store_dwordx4 v[24:27], v14, s[32:35], s70 offen sc1")
    a("s_mov_b64 exec, -1")
    stamp(10)
    a("v_lshrrev_b32 v28, 2, v2"); a("v_and_b32 v29, 3, v2")
    a("v_lshrrev_b32 v30, 1, v28"); a("v_and_b32 v31, 1, v3"); a("v_lshlrev_b32 v31, 1, v31"); a("v_xor_b32 v30, v30, v31")
    a("v_xor_b32 v30, s49, v30"); a("v_lshlrev_b32 v30, 5, v30"); a("v_lshl_add_u32 v30, v29, 3, v30")
    a("v_lshl_add_u32 v30, v28, 7, v30"); a("v_lshl_add_u32 v30, v3, 10, v30")
    a(f"v_add_u32 v32, {L_V}, v30"); a("v_xor_b32 v30, 64, v30"); a(f"v_add_u32 v33, {L_V+512}, v30")
    for ck in range(9):
        if ck % 3 == 0: wait_flag(O_PROG, 218 + 4*(ck+3))
        a(f"ds_read_b64_tr_b16 v[{64+4*ck}:{65+4*ck}], v32 offset:{4096*ck}")
        a(f"ds_read_b64_tr_b16 v[{66+4*ck}:{67+4*ck}], v33 offset:{4096*ck}")
    a("s_mov_b32 s52, 0x22222222"); a("s_mov_b32 s53, 0x22222222")
    a("s_mov_b32 s54, 0x44444444"); a("s_mov_b32 s55, 0x44444444")
    a("s_mov_b32 s56, 0x88888888"); a("s_mov_b32 s57, 0x88888888")
    a("s_cmp_eq_u32 s65, 0"); a("s_cselect_b64 s[58:59], 0, -1")
    a("v_cndmask_b32 v34, v20, v21, s[52:53]"); a("v_cndmask_b32 v34, v34, v22, s[54:55]"); a("v_cndmask_b32 v34, v34, v23, s[56:57]")
    L = a.label("Lg"); a(f"{L}:")
    a("buffer_load_dwordx4 v[24:27], v14, s[32:35], s69 offen sc1")
    a("s_waitcnt vmcnt(0)")
    tagcheck([24], 35, L)
    stamp(11)
    unpack_b(28, 24)
    a("v_cndmask_b32 v35, v24, v28, s[52:53]"); a("v_cndmask_b32 v35, v35, v25, s[54:55]"); a("v_cndmask_b32 v35, v35, v26, s[56:57]")
    a("v_and_b32 v35, 0xffff0000, v35")
    a("v_cndmask_b32 v36, v34, v35, s[58:59]")
    a("v_cndmask_b32 v37, v35, v34, s[58:59]")
    a("v_mul_f32 v38, v36, v36"); a("v_mov_b32 v39, 1.0"); a("v_fmac_f32 v39, 0x3d372713, v38")
    a("v_mul_f32 v39, v39, v36")
    a("v_mul_f32 v39, 0xc0135761, v39")
    a("v_exp_f32 v39, v39"); a("v_add_f32 v39, 1.0, v39"); a("v_rcp_f32 v39, v39"); a("v_mul_f32 v39, v39, v36")
    rnd1(39, 38)
    a("v_mul_f32 v39, v39, v37"); a("v_cvt_pk_bf16_f32 v39, v39, v39")
    a("v_and_b32 v14, 1, v3"); a("v_lshlrev_b32 v14, 3, v14"); a("v_and_b32 v38, 3, v2"); a("v_lshl_add_u32 v14, v38, 1, v14")
    a("s_lshl_b32 s51, s49, 4"); a("v_add_u32 v14, s51, v14"); a("v_add_u32 v14, v14, v4")
    a("s_cmp_eq_u32 s65, 0")
    a("s_cselect_b32 exec_lo, 0x000f000f, 0"); a("s_cselect_b32 exec_hi, 0, 0x000f000f")
    a(f"ds_write_b16 v14, v39 offset:{O_HH}")
    a("s_mov_b64 exec, -1")
    arrive(F_HH)
    a("v_lshl_add_u32 v14, v3, 4, v4")
    for r in range(4): a(f"v_mov_b32 v{20+r}, 0")
    a("s_mov_b32 s52, 0x00010001"); a("s_mov_b32 s53, 0x00010001")
    wait_flag(F_HH, 4)
    a(f"ds_read_b128 v[24:27], v14 offset:{O_HH}")
    a("s_waitcnt lgkmcnt(0)")
    for ck in range(9):
        B = 28 + 4*(ck & 1)
        for r in range(4): a(f"v_cndmask_b32 v{B+r}, 0, v{24+r}, s[52:53]")
        if ck < 8: a("s_lshl_b64 s[52:53], s[52:53], 1")
        a(f"v_mfma_f32_16x16x32_bf16 v[20:23], v[{64+4*ck}:{67+4*ck}], v[{B}:{B+3}], v[20:23]")
    a("s_mul_i32 s51, s28, 18"); a("s_add_u32 s51, s51, s29")
    a("s_lshr_b32 s52, s51, 4"); a("s_lshl_b32 s52, s52, 10"); a("s_and_b32 s51, s51, 15"); a("s_lshl_b32 s51, s51, 4"); a("s_add_u32 s51, s51, s52")
    a("s_mul_i32 s52, s49, 9216"); a("s_add_u32 s51, s51, s52"); a(f"s_add_u32 s51, s51, {W_D}")
    a("v_mul_u32_u24 v14, 36864, v2"); a("v_lshl_add_u32 v14, v3, 8, v14")
    pack_gran(24, 20)
    a("s_mov_b32 exec_lo, 0x01ff01ff"); a("s_mov_b32 exec_hi, 0x01ff01ff")
    a("buffer_store_dwordx4 v[24:27], v14, s[32:35], s51 offen sc1")
    a("s_mov_b64 exec, -1")
    stamp(11) if False else None

    a("L_fin:")
    if cfg.debug:
        a("s_memrealtime s[96:97]")
        a("s_getreg_b32 s71, hwreg(HW_REG_XCC_ID)")
        a("s_waitcnt lgkmcnt(0) vmcnt(0)")
        a("s_mov_b64 exec, -1")
        srd(44, 26, W_SIZE + 0x100000)
        for k in range(12): a(f"v_mov_b32 v{20+k}, s{72+2*k}")
        a("v_mov_b32 v32, s96"); a("v_mov_b32 v33, s71"); a("v_mov_b32 v34, s50"); a("v_mov_b32 v35, 0")
        a("s_mul_i32 s51, s2, 5"); a("s_add_u32 s51, s51, s3"); a("s_lshl_b32 s51, s51, 6"); a(f"s_add_u32 s51, s51, {W_STAMP}")
        a("v_mov_b32 v14, 0")
        a("s_mov_b64 exec, 1")
        for k in range(4): a(f"buffer_store_dwordx4 v[{20+4*k}:{23+4*k}], v14, s[44:47], s51 offen offset:{16*k}")
    a("s_waitcnt vmcnt(0)")
    a("L_end:")
    a("s_endpgm")
    body = a.text()
    nbytes_est = 0
    head = f"""; sequential pre-LN decode layer: LN -> q -> sliding-window GQA attention -> wo -> LN -> GeGLU FFN
; @launch grid=(256,1,1) block=(320,1,1) lds={LDS_BYTES}
.amdgcn_target "amdgcn-amd-amdhsa--gfx950"
.set CODE_KB, {cfg.code_kb if hasattr(cfg, 'code_kb') else 14}
.text
.globl {NAME}
.p2align 8
.type {NAME},@function
{NAME}:
"""
    tail = '.section .rodata,"a"\n.p2align 6\n' + KD.format(name=NAME, vgpr=240, sgpr=100, accum=240)
    return head + body + tail

if __name__ == "__main__":
    dbg = "debug" in sys.argv
    s = gen(Cfg(debug=dbg))
    out = sys.argv[1] if len(sys.argv) > 1 else "sequential_preLN__sliding_block_cached__glu_gated_geglu__decode.s"
    open(out, "w").write(s)
    print("wrote", out, len(s), "bytes")
```

```python
import sys
from asmb import Asm, KD

NAME = "sequential_preLN__sliding_block_cached__glu_gated_geglu__decode_kernel"

L_WQ, L_K, L_V, L_SCR = 0, 18432, 83968, 149504
LDS_BYTES = 163840
O_PROG = 0
O_FL = 256
F_KFREE, F_VFREE, F_QRDY, F_MAXR, F_PRDY, F_RED, F_ST, F_LN2, F_HH = [O_FL + 4*k for k in range(9)]
O_LN1 = 512
O_Q = 1664
O_MX = 2176
O_LS = 2208
O_P = 2304
O_LN2 = 3328
O_RED = 4480
O_STAT = 5504
O_HH = 5568
W_EPOCH = 0
W_A = 0x1000
W_B = 0x20000
W_ML = 0x60000
W_C = 0x70000
W_E = 0x78000
W_D = 0x90000
W_SIZE = 0x100000
W_STAMP = 0x100000
TAG_INC = 0x9E3779B9
SCALE = 0x3DB504F3
LOG2E = 0x3FB8AA3B

class Cfg:
    W = 24
    WF = 32
    WS = 40
    WS0 = 36
    nt = True
    debug = False
    budget = 60000
    prefetch_code = True
    cpoll = False
    zsets = 1
    ssets = 1
    esets = 1
    pvgroups = [[0,1,2,3],[4,5],[6],[7]]
    WF1 = 16
    NF1 = 32
    nopub = False
    nogather = False
    lsleep = 0
    qsleep = 0
    noqcheck = False
    stop_after = None
    loader_only = False
    rot = 5
    csleep = 0
    def __init__(self, **k):
        for a, b in k.items(): setattr(self, a, b)

def gen(cfg):
    a = Asm()
    ntf = " nt" if cfg.nt else ""
    nstamp = [0]
    def stamp(k):
        if cfg.debug:
            a(f"s_memrealtime s[{72+2*k}:{73+2*k}]")
    def srd(d, p, size):
        a(f"s_mov_b32 s{d}, s{p}"); a(f"s_mov_b32 s{d+1}, s{p+1}")
        a(f"s_mov_b32 s{d+2}, {size}"); a(f"s_mov_b32 s{d+3}, 0x20000")
    def spin_tail(L):
        a("s_sub_u32 s50, s50, 1")
        a(f"s_cbranch_scc0 {L}")
        a("s_mov_b32 s50, 0")
    def wait_flag(off, n, vt=15, signed=False):
        L = a.label("Lw")
        a(f"{L}:")
        if cfg.lsleep: a(f"s_sleep {cfg.lsleep}")
        a(f"ds_read_b32 v{vt}, v4 offset:{off}")
        a("s_waitcnt lgkmcnt(0)")
        a(f"v_readfirstlane_b32 s51, v{vt}")
        a(f"s_cmp_ge_i32 s51, {n}")
        a(f"s_cbranch_scc1 {L}d")
        spin_tail(L)
        a(f"{L}d:")
    def arrive(off):
        a("s_mov_b64 exec, 1")
        a(f"ds_add_u32 v4, v5 offset:{off}")
        a("s_mov_b64 exec, -1")
    def row_red(op, v, steps=(8, 4, 2, 1)):
        for s in steps:
            a(f"{op}_dpp v{v}, v{v}, v{v} row_ror:{s} row_mask:0xf bank_mask:0xf")
    def xrow_red(op, v, t):
        a(f"v_mov_b32 v{t}, v{v}"); a(f"v_permlane16_swap_b32 v{v}, v{t}"); a(f"{op} v{v}, v{v}, v{t}")
        a(f"v_mov_b32 v{t}, v{v}"); a(f"v_permlane32_swap_b32 v{v}, v{t}"); a(f"{op} v{v}, v{v}, v{t}")
    def all_red(op, v, t):
        row_red(op, v); xrow_red(op, v, t)
    def rnd1(v, t):
        a(f"v_cvt_pk_bf16_f32 v{t}, v{v}, v{v}"); a(f"v_lshlrev_b32 v{v}, 16, v{t}")
    def rnd2(x, y, t):
        a(f"v_cvt_pk_bf16_f32 v{t}, v{x}, v{y}"); a(f"v_lshlrev_b32 v{x}, 16, v{t}"); a(f"v_and_b32 v{y}, 0xffff0000, v{t}")
    def pack_gran(d, q):
        a(f"v_perm_b32 v{d}, v{q}, v{q+1}, s60")
        a(f"v_perm_b32 v{d+1}, v{q+2}, v{q+1}, s61")
        a(f"v_perm_b32 v{d+2}, v{q+3}, v{q+1}, s62")
        a(f"v_mov_b32 v{d+3}, v6")
    def unpack_b(dst, gq):
        a(f"v_perm_b32 v{dst}, v{gq+2}, v{gq+1}, s63")
        a(f"v_perm_b32 v{dst}, v{dst}, v{gq}, s64")
    def tagcheck(grs, acc, L):
        a(f"v_xor_b32 v{acc}, v{grs[0]+3}, v6")
        for gq in grs[1:]:
            a(f"v_bitop3_b32 v{acc}, v{gq+3}, v6, v{acc} bitop3:0xbe")
        a(f"v_cmp_ne_u32 vcc, 0, v{acc}")
        a(f"s_cbranch_vccz {L}d")
        spin_tail(L)
        a(f"{L}d:")

    if cfg.debug:
        for k in range(72, 98): a(f"s_mov_b32 s{k}, 0")
    stamp(0)
    a("s_cmp_ge_u32 s2, 256"); a("s_cbranch_scc1 L_end")
    a("s_load_dwordx16 s[4:19], s[0:1], 0")
    a("s_load_dwordx8 s[20:27], s[0:1], 64")
    a("v_lshrrev_b32 v2, 6, v0")
    a("v_and_b32 v1, 63, v0")
    a("s_and_b32 s28, s2, 7")
    a("v_readfirstlane_b32 s3, v2")
    a("s_lshr_b32 s29, s2, 3")
    a("s_lshr_b32 s30, s29, 4"); a("s_lshl_b32 s31, s28, 1"); a("s_add_u32 s30, s30, s31")
    a("s_and_b32 s31, s29, 15")
    a(f"s_mov_b32 s50, {cfg.budget}")
    a(f"v_mov_b32 v4, {L_SCR}")
    a("s_cmp_eq_u32 s3, 0"); a("s_cbranch_scc0 L_compute")

    a("s_setprio 3")
    a("v_lshrrev_b32 v2, 3, v1"); a("v_and_b32 v3, 7, v1")
    a("v_bfe_u32 v8, v2, 1, 2"); a("v_lshlrev_b32 v8, 1, v8"); a("v_xor_b32 v3, v3, v8"); a("v_lshlrev_b32 v3, 4, v3")
    a("v_lshl_add_u32 v10, v2, 13, v3")
    a("s_lshr_b32 s64, s31, 2"); a(f"s_mul_i32 s64, s64, {144*8192}")
    a("s_and_b32 s65, s31, 3"); a("s_lshl_b32 s65, s65, 7"); a("s_add_u32 s64, s64, s65")
    a("s_lshl_b32 s65, s30, 9"); a("s_add_u32 s64, s64, s65")
    a(f"s_mov_b32 m0, {L_WQ}")
    a("s_mov_b32 s46, 4718592"); a("s_mov_b32 s47, 0x20000")
    a("s_waitcnt lgkmcnt(0)")
    a("s_mov_b32 s44, s10"); a("s_mov_b32 s45, s11")
    stamp(1)
    st = dict(W=cfg.W)
    def pub():
        a("v_add_u32 v20, 1, v20"); a("ds_write_b32 v21, v20")
    def issue(voff, soff, imm=0, wait=True):
        a(f"buffer_load_dwordx4 v{voff}, s[44:47], {soff} offen offset:{imm}{ntf} lds")
        if wait:
            a(f"s_waitcnt vmcnt({st['W']-1})"); pub()
    def loop_begin(n):
        L = a.label("Ll"); a(f"s_mov_b32 s67, {n}"); a(f"{L}:"); return L
    def loop_end(L):
        a("s_sub_u32 s67, s67, 1"); a("s_cbranch_scc0 " + L)
    loop_begin0 = loop_begin
    def loop_begin(n): return loop_begin0(n - 1)
    assert cfg.W - 1 >= 18
    L = loop_begin(6)
    for q in range(3):
        issue(10, "s64", wait=False)
        a("s_add_u32 m0, m0, 1024"); a(f"s_add_u32 s64, s64, {8*8192}")
    loop_end(L)
    stamp(6)
    a("v_mov_b32 v6, 0"); a("v_mov_b32 v7, 0")
    a("v_lshl_add_u32 v5, v1, 3, v4")
    a("ds_write_b64 v5, v[6:7]")
    a("v_mul_u32_u24 v8, 1152, v2"); a("v_add_u32 v11, v8, v3")
    a("v_xor_b32 v19, 64, v11")
    a("v_mul_u32_u24 v8, 9216, v2"); a("v_add_u32 v18, v8, v3")
    a("v_lshrrev_b32 v2, 4, v1"); a("v_and_b32 v3, 15, v1")
    a("v_xor_b32 v8, v3, v2"); a("v_lshlrev_b32 v8, 4, v8"); a("v_lshl_add_u32 v12, v2, 8, v8")
    a("v_xor_b32 v13, 64, v12"); a("v_xor_b32 v14, 0x80, v12"); a("v_xor_b32 v15, 0xc0, v12")
    a("v_lshlrev_b32 v8, 1, v2"); a("v_xor_b32 v8, v3, v8"); a("v_lshlrev_b32 v8, 4, v8"); a("v_lshl_add_u32 v16, v2, 8, v8")
    a("v_xor_b32 v17, 0x80, v16")
    a("v_lshl_add_u32 v21, v1, 2, v4")
    a(f"v_mov_b32 v20, {18-(cfg.W-1)}")
    a("s_lshl_b32 s65, s30, 24"); a(f"s_add_u32 s65, s65, {61440*256}")
    a("s_lshl_b32 s66, s31, 16"); a("s_add_u32 s65, s65, s66")
    if cfg.rot:
        a(f"s_mul_i32 s69, s2, {cfg.rot}"); a("s_lshr_b32 s70, s69, 4"); a("s_add_u32 s69, s69, s70"); a("s_and_b32 s69, s69, 15"); a("s_lshl_b32 s69, s69, 12")
    else:
        a("s_mov_b32 s69, 0")
    a("s_waitcnt lgkmcnt(0)")
    a("s_barrier")
    stamp(7)
    def kv(ptr, lds, vo, nv):
        srd(44, ptr, 0x10000000)
        a(f"s_mov_b32 m0, {lds}"); a("s_mov_b32 s68, s69")
        L = loop_begin(16)
        a("s_add_u32 s66, s65, s68")
        for q in range(4): issue(vo + (q % nv), "s66", q*1024)
        a("s_add_u32 m0, m0, 4096"); a("s_add_u32 s68, s68, 4096"); a("s_and_b32 s68, s68, 0xffff")
        loop_end(L)
    def kvphases():
        kv(6, L_K, 12, 4)
        stamp(2)
        kv(8, L_V, 16, 2)
        stamp(3)
    a("s_cmp_lt_u32 s29, 18"); a("s_cbranch_scc1 L_ldA")
    a("s_cmp_lt_u32 s29, 27"); a("s_cbranch_scc1 L_ldS0")
    a("L_ldA:")
    kvphases()
    def lwait_flag(off, n):
        L = a.label("Lw")
        a(f"{L}:")
        a(f"ds_read_b32 v22, v4 offset:{off}")
        a("s_waitcnt lgkmcnt(0)")
        a("v_readfirstlane_b32 s51, v22")
        a(f"s_cmp_ge_i32 s51, {n}")
        a(f"s_cbranch_scc1 {L}d")
        spin_tail(L)
        a(f"{L}d:")
    def widen_issue(newW, emit_one):
        for k in range(newW - st['W']): emit_one(False)
        st['W'] = newW
    def drain():
        for k in range(st['W']-2, -1, -1):
            a(f"s_waitcnt vmcnt({k})"); pub()
    a("s_cmp_lt_u32 s29, 18"); a("s_cbranch_scc1 L_ldF")
    st['W'] = cfg.W
    drain()
    a("s_branch L_ldEnd")
    a("L_ldS0:")
    st['W'] = cfg.WS0
    a(f"v_mov_b32 v20, {18-(cfg.WS0-1)}")
    kvphases()
    lwait_flag(F_KFREE, 4)
    srd(44, 12, 4718592)
    a("s_sub_u32 s66, s29, 18"); a("s_lshl_b32 s66, s66, 7"); a(f"s_mul_i32 s68, s28, {512*1152}"); a("s_add_u32 s66, s66, s68")
    a(f"s_mov_b32 m0, {L_WQ}")
    a("v_lshrrev_b32 v2, 3, v1"); a("v_and_b32 v3, 7, v1"); a("v_bfe_u32 v8, v2, 1, 1"); a("v_lshlrev_b32 v8, 1, v8"); a("v_xor_b32 v3, v3, v8")
    a("v_lshlrev_b32 v3, 4, v3"); a("v_mul_u32_u24 v8, 1152, v2"); a("v_add_u32 v24, v8, v3"); a("v_xor_b32 v23, 64, v24")
    cnt = [0]
    def one_wo(wait):
        issue(23 if (cnt[0] >> 1) & 1 else 24, "s66", wait=wait); a("s_add_u32 m0, m0, 1024"); a(f"s_add_u32 s66, s66, {8*1152}")
        cnt[0] += 1
    ex = (cfg.WS - st['W'] + 3) // 4 * 4 if cfg.WS > st['W'] else 0
    widen_issue(st['W'] + ex, one_wo)
    L = loop_begin((64 - ex) // 4)
    for q in range(4): one_wo(True)
    loop_end(L)
    drain()
    a("s_branch L_ldEnd")
    a("L_ldF:")
    st['W'] = cfg.W
    lwait_flag(F_KFREE, 4)
    srd(44, 16, 5308416)
    a("s_bitcmp1_b32 s29, 0"); a("s_cselect_b32 s44, s18, s16"); a("s_cselect_b32 s45, s19, s17")
    a("s_lshr_b32 s68, s29, 1"); a("s_mul_i32 s69, s28, 9"); a("s_add_u32 s68, s68, s69")
    a("s_lshl_b32 s66, s68, 7")
    a(f"s_mov_b32 m0, {L_WQ}")
    def one_m(wait):
        issue(18, "s66", wait=wait); a("s_add_u32 m0, m0, 1024"); a(f"s_add_u32 s66, s66, {8*9216}")
    if cfg.WF1 and cfg.WF1 < cfg.W:
        for k in range(cfg.W - cfg.WF1):
            a(f"s_waitcnt vmcnt({cfg.W - 2 - k})"); pub()
        st['W'] = cfg.WF1
        L = loop_begin(cfg.NF1); one_m(True); loop_end(L)
        done = cfg.NF1
    else:
        done = 0
    ex = cfg.WF - st['W']
    widen_issue(cfg.WF, one_m)
    L = loop_begin(72 - done - ex); one_m(True); loop_end(L)
    stamp(4)
    lwait_flag(F_VFREE, 4)
    srd(44, 20, 5308416)
    a("s_and_b32 s69, s29, 1"); a("s_lshl_b32 s69, s69, 3"); a("s_lshl_b32 s68, s68, 6"); a("s_add_u32 s68, s68, s69")
    a("s_mul_i32 s66, s68, 1152")
    a(f"s_mov_b32 m0, {L_V}")
    L = loop_begin(9)
    for o in range(4):
        a(f"s_add_u32 s68, s66, {o*16*1152}")
        issue(19 if (o & 1) else 11, "s68")
        a("s_add_u32 m0, m0, 1024")
    a("s_add_u32 s66, s66, 128")
    loop_end(L)
    drain()
    a("L_ldEnd:")
    stamp(5)
    a("s_branch L_fin")

    DPP = "row_mask:0xf bank_mask:0xf"
    J0 = lambda: (a("s_mov_b32 exec_lo, 0x00010001"), a("s_mov_b32 exec_hi, 0x00010001"))
    J01 = lambda: (a("s_mov_b32 exec_lo, 0x00030003"), a("s_mov_b32 exec_hi, 0x00030003"))
    FULL = lambda: a("s_mov_b64 exec, -1")
    def wait_prog_s(thr):
        L = a.label("Lw")
        a(f"s_cmp_ge_i32 s47, {thr}"); a(f"s_cbranch_scc1 {L}d")
        a(f"{L}:")
        if cfg.lsleep: a(f"s_sleep {cfg.lsleep}")
        a(f"ds_read_b32 v15, v4 offset:{O_PROG}"); a("s_waitcnt lgkmcnt(0)"); a("v_readfirstlane_b32 s47, v15")
        a(f"s_cmp_ge_i32 s47, {thr}"); a(f"s_cbranch_scc1 {L}d"); spin_tail(L); a(f"{L}d:")
    def red2(op, x, y, tx, ty):
        for s_ in (8, 4, 2, 1):
            a(f"{op}_dpp v{x}, v{x}, v{x} row_ror:{s_} {DPP}"); a(f"{op}_dpp v{y}, v{y}, v{y} row_ror:{s_} {DPP}")
        for sw in ("v_permlane16_swap_b32", "v_permlane32_swap_b32"):
            a(f"v_mov_b32 v{tx}, v{x}"); a(f"v_mov_b32 v{ty}, v{y}")
            a(f"{sw} v{x}, v{tx}"); a(f"{sw} v{y}, v{ty}")
            a(f"{op} v{x}, v{x}, v{tx}"); a(f"{op} v{y}, v{y}, v{ty}")
    def ln_final(mean, var, t):
        a(f"v_max_f32 v{var}, 0, v{var}")
        a(f"v_cvt_pk_bf16_f32 v{t}, v{var}, v{mean}")
        a(f"v_lshlrev_b32 v{var}, 16, v{t}"); a(f"v_and_b32 v{mean}, 0xffff0000, v{t}")
        a(f"v_add_f32 v{var}, 0x3727c5ac, v{var}"); rnd1(var, t)
        a(f"v_sqrt_f32 v{var}, v{var}"); rnd1(var, t); a(f"v_rcp_f32 v{var}, v{var}")

    a("L_compute:")
    a("s_sub_u32 s49, s3, 1")
    a("s_mov_b32 s47, -1000")
    a("v_and_b32 v2, 15, v1"); a("v_lshrrev_b32 v3, 4, v1")
    a("v_mov_b32 v5, 1")
    a("s_mov_b32 s60, 0x07060501"); a("s_mov_b32 s61, 0x07060502"); a("s_mov_b32 s62, 0x07060503")
    a("s_mov_b32 s63, 0x04000c0c"); a("s_mov_b32 s64, 0x0706000c")
    a("v_lshlrev_b32 v14, 5, v1")
    a("v_min_u32 v15, 35, v1"); a("s_mul_i32 s51, s49, 36"); a("v_add_u32 v15, s51, v15"); a("v_lshlrev_b32 v18, 3, v15")
    a("s_mul_i32 s52, s28, 5"); a("s_add_u32 s52, s52, s29"); a("s_sub_u32 s52, s52, 27")
    a("s_lshl_b32 s53, s52, 5"); a("v_and_b32 v19, 3, v1"); a("v_lshl_add_u32 v19, v19, 3, s53")
    a("s_cmp_ge_u32 s29, 27"); a("s_cselect_b64 s[56:57], -1, 0")
    a("v_cndmask_b32 v18, v18, v19, s[56:57]")
    a("s_waitcnt lgkmcnt(0)")
    srd(36, 4, 1152)
    a("buffer_load_dwordx4 v[20:23], v14, s[36:39], 0 offen")
    a("buffer_load_dwordx4 v[24:27], v14, s[36:39], 0 offen offset:16")
    a("buffer_load_dwordx2 v[16:17], v18, s[36:39], 0 offen")
    a("s_load_dword s48, s[26:27], 0")
    a("s_mov_b32 s71, 0")
    if cfg.prefetch_code:
        a("s_cmp_eq_u32 s29, 31"); a("s_cbranch_scc0 L_nopf")
        a("s_cmp_eq_u32 s49, 3"); a("s_cbranch_scc0 L_nopf")
        a("s_mov_b32 s71, 1")
        a("s_getpc_b64 s[52:53]")
        a("s_and_b32 s52, s52, 0xffffff00")
        a("v_lshlrev_b32 v15, 4, v1")
        a("s_mov_b32 s51, CODE_KB")
        a("L_pfl:")
        a("global_load_dwordx4 v[252:255], v15, s[52:53]")
        a("v_add_u32 v15, 1024, v15")
        a("s_sub_u32 s51, s51, 1"); a("s_cmp_lg_u32 s51, 0"); a("s_cbranch_scc1 L_pfl")
        a("L_nopf:")
    a("s_barrier")
    if cfg.loader_only:
        arrive(F_KFREE); arrive(F_VFREE); a("s_branch L_fin")
    srd(32, 26, W_SIZE + (0x100000 if cfg.debug else 0)); srd(40, 22, 1152)
    a("v_lshrrev_b32 v28, 2, v2"); a("v_and_b32 v29, 3, v2")
    a("v_and_b32 v30, 1, v3"); a("v_lshrrev_b32 v31, 1, v3")
    a("v_lshl_add_u32 v32, v30, 2, v28")
    a("v_lshrrev_b32 v33, 1, v32")
    a("v_xor_b32 v33, s49, v33"); a("v_lshlrev_b32 v33, 5, v33")
    a("v_lshl_add_u32 v33, v29, 3, v33")
    a("v_lshl_add_u32 v33, v32, 7, v33")
    a("v_lshl_add_u32 v7, v31, 10, v33")
    a("v_lshl_add_u32 v33, v3, 2, v28")
    a("s_lshl_b32 s51, s49, 1"); a("v_xor_b32 v34, s51, v32"); a("v_lshlrev_b32 v34, 5, v34")
    a("v_lshl_add_u32 v34, v29, 3, v34"); a("v_lshl_add_u32 v34, v33, 8, v34")
    a(f"v_add_u32 v8, {L_V}, v34"); a("v_xor_b32 v34, 32, v34"); a(f"v_add_u32 v9, {L_V}, v34")
    a("v_xor_b32 v33, v3, v2"); a("v_lshlrev_b32 v33, 4, v33"); a("v_lshl_add_u32 v33, v2, 8, v33")
    a("s_lshl_b32 s51, s49, 14"); a(f"s_add_u32 s51, s51, {L_K}")
    for c in range(4):
        if c: a(f"v_xor_b32 v34, {64*c}, v33"); a(f"v_add_u32 v{10+c}, s51, v34")
        else: a("v_add_u32 v10, s51, v33")
    a(f"v_add_u32 v50, {O_LN1}, v14"); a("v_add_u32 v50, v50, v4")
    a("s_lshr_b32 s51, s31, 2"); a("s_mul_i32 s51, s51, 288"); a(f"s_add_u32 s51, s51, {L_SCR+O_LN1}")
    a("v_lshl_add_u32 v51, v3, 3, s51")
    a("v_and_b32 v33, 1, v2")
    a("v_lshlrev_b32 v34, 8, v33"); a("v_lshl_add_u32 v34, v3, 4, v34"); a("v_add_u32 v52, v34, v4")
    a("v_lshl_add_u32 v53, v33, 4, v4"); a("s_lshl_b32 s51, s49, 2"); a("v_add_u32 v54, s51, v53")
    a("v_lshl_add_u32 v55, v3, 5, v53"); a("s_lshl_b32 s51, s49, 8"); a("v_add_u32 v56, s51, v55")
    a("s_lshl_b32 s65, s30, 2"); a("s_lshr_b32 s52, s31, 2"); a("s_add_u32 s65, s65, s52"); a("s_lshl_b32 s65, s65, 10")
    a("s_and_b32 s52, s31, 3"); a("s_lshl_b32 s52, s52, 8"); a("s_add_u32 s65, s65, s52")
    a("s_lshl_b32 s52, s49, 6"); a("s_add_u32 s65, s65, s52"); a(f"s_add_u32 s65, s65, {W_A}")
    a("v_lshlrev_b32 v57, 4, v3")
    a("s_lshl_b32 s66, s30, 14"); a("s_lshl_b32 s52, s31, 9"); a("s_add_u32 s66, s66, s52")
    a("s_lshl_b32 s52, s49, 7"); a("s_add_u32 s66, s66, s52"); a(f"s_add_u32 s66, s66, {W_B}")
    a("v_and_b32 v58, 1, v2"); a("v_lshlrev_b32 v58, 13, v58"); a("v_bfe_u32 v33, v2, 1, 1"); a("v_lshl_add_u32 v58, v33, 6, v58"); a("v_lshl_add_u32 v58, v3, 4, v58")
    a("s_lshl_b32 s67, s30, 12"); a("s_lshl_b32 s52, s31, 7"); a("s_add_u32 s67, s67, s52"); a(f"s_add_u32 s67, s67, {W_ML}")
    a("v_lshlrev_b32 v59, 11, v2")
    a("s_lshl_b32 s68, s30, 12"); a(f"s_add_u32 s68, s68, {W_A}")
    a("s_lshl_b32 s69, s49, 4"); a("s_add_u32 s69, s69, 34")
    a("v_mov_b32 v44, 0"); a("v_mov_b32 v45, 0")
    a("s_waitcnt lgkmcnt(0)")
    a(f"s_add_u32 s48, s48, {TAG_INC}")
    a("v_mov_b32 v6, s48")
    a("s_cmp_eq_u32 s71, 0"); a("s_cbranch_scc1 L_xw0")
    a("s_waitcnt vmcnt(CODE_KB)"); a("s_branch L_xw1")
    a("L_xw0:"); a("s_waitcnt vmcnt(0)"); a("L_xw1:")
    stamp(1)
    a("v_lshlrev_b32 v28, 16, v20")
    a("v_and_b32 v29, 0xffff0000, v20")
    a("v_readfirstlane_b32 s52, v28")
    for k in range(1, 8):
        a(f"v_lshlrev_b32 v{28+2*k}, 16, v{20+k}"); a(f"v_and_b32 v{29+2*k}, 0xffff0000, v{20+k}")
    a("s_mov_b32 exec_hi, 15")
    for k in range(8): a(f"v_pk_add_f32 v[{64+2*k}:{65+2*k}], v[{28+2*k}:{29+2*k}], s[52:53] op_sel_hi:[1,0] neg_lo:[0,1] neg_hi:[0,1]")
    a("v_pk_mul_f32 v[46:47], v[64:65], v[64:65]")
    for k in range(1, 8): a(f"v_pk_fma_f32 v[46:47], v[{64+2*k}:{65+2*k}], v[{64+2*k}:{65+2*k}], v[46:47]")
    for k in range(4): a(f"v_pk_add_f32 v[{64+2*k}:{65+2*k}], v[{64+2*k}:{65+2*k}], v[{72+2*k}:{73+2*k}]")
    a("v_pk_add_f32 v[64:65], v[64:65], v[66:67]"); a("v_pk_add_f32 v[68:69], v[68:69], v[70:71]"); a("v_pk_add_f32 v[64:65], v[64:65], v[68:69]")
    a("v_add_f32 v44, v64, v65"); a("v_add_f32 v45, v46, v47")
    FULL()
    red2("v_add_f32", 44, 45, 46, 47)
    a("v_mul_f32 v44, 0x3ae38e39, v44"); a("v_mul_f32 v45, 0x3ae38e39, v45")
    a("v_fma_f32 v45, -v44, v44, v45"); a("v_add_f32 v44, s52, v44")
    ln_final(44, 45, 46)
    for k in range(8): a(f"v_pk_add_f32 v[{28+2*k}:{29+2*k}], v[{28+2*k}:{29+2*k}], v[44:45] op_sel_hi:[1,0] neg_lo:[0,1] neg_hi:[0,1]")
    for k in range(8): a(f"v_cvt_pk_bf16_f32 v{20+k}, v{28+2*k}, v{29+2*k}")
    for k in range(8):
        a(f"v_lshlrev_b32 v{28+2*k}, 16, v{20+k}"); a(f"v_and_b32 v{29+2*k}, 0xffff0000, v{20+k}")
    for k in range(8): a(f"v_pk_mul_f32 v[{28+2*k}:{29+2*k}], v[{28+2*k}:{29+2*k}], v[44:45] op_sel:[0,1] op_sel_hi:[1,1]")
    for k in range(8): a(f"v_cvt_pk_bf16_f32 v{20+k}, v{28+2*k}, v{29+2*k}")
    a("s_mov_b32 exec_hi, 15")
    a("ds_write_b128 v50, v[20:23]"); a("ds_write_b128 v50, v[24:27] offset:16")
    FULL()
    stamp(2)
    for r in range(4): a(f"v_mov_b32 v{60+r}, 0")
    wait_prog_s(18)
    for t in range(9):
        a(f"ds_read_b64 v[{20+2*t}:{21+2*t}], v51 offset:{32*t}")
        a(f"ds_read_b64_tr_b16 v[{64+2*t}:{65+2*t}], v7 offset:{L_WQ + 2048*t}")
    for t in range(9):
        if t in (0, 3, 6): a(f"s_waitcnt lgkmcnt({min(15, 2*(6-t))})")
        a(f"v_mfma_f32_16x16x16_bf16 v[60:63], v[{64+2*t}:{65+2*t}], v[{20+2*t}:{21+2*t}], v[60:63]")
    pack_gran(64, 60)
    J0()
    if not cfg.nopub: a("buffer_store_dwordx4 v[64:67], v57, s[32:35], s65 offen sc1")
    FULL()
    stamp(3)
    wait_prog_s("s69")
    for t in range(4):
        for c in range(4):
            a(f"ds_read_b128 v[{64+16*t+4*c}:{67+16*t+4*c}], v{10+c} offset:{4096*t}")
    a("s_waitcnt lgkmcnt(0)")
    arrive(F_KFREE)
    a("s_cmp_eq_u32 s49, 0"); a("s_cbranch_scc0 L_noq")
    a("v_lshlrev_b32 v14, 4, v1"); a("v_lshlrev_b32 v19, 3, v1"); a("v_add_u32 v19, v19, v4")
    L = a.label("Lg"); a(f"{L}:")
    if cfg.qsleep: a(f"s_sleep {cfg.qsleep}")
    if not cfg.nogather:
        for kp in range(4): a(f"buffer_load_dwordx4 v[{20+4*kp}:{23+4*kp}], v14, s[32:35], s68 offen offset:{1024*kp} sc1")
    a("s_waitcnt vmcnt(0)")
    if not cfg.noqcheck: tagcheck([20, 24, 28, 32], 36, L)
    for kp in range(4): unpack_b(40+kp, 20+4*kp)
    a("v_pk_add_f32 v[20:21], v[20:21], v[24:25]"); a("v_pk_add_f32 v[28:29], v[28:29], v[32:33]"); a("v_pk_add_f32 v[20:21], v[20:21], v[28:29]")
    a("v_pk_add_f32 v[40:41], v[40:41], v[42:43]"); a("v_add_f32 v40, v40, v41")
    a("v_add_f32 v22, v22, v26"); a("v_add_f32 v30, v30, v34"); a("v_add_f32 v22, v22, v30")
    a("v_cvt_pk_bf16_f32 v48, v20, v40"); a("v_cvt_pk_bf16_f32 v49, v21, v22")
    a(f"ds_write_b64 v19, v[48:49] offset:{O_Q}")
    arrive(F_QRDY)
    a("L_noq:")
    for r in range(16): a(f"v_mov_b32 v{144+r}, 0")
    wait_flag(F_QRDY, 1)
    stamp(4)
    for c in range(4): a(f"ds_read_b128 v[{128+4*c}:{131+4*c}], v52 offset:{O_Q + 64*c}")
    a(f"s_mov_b32 s52, {SCALE:#x}"); a(f"s_mov_b32 s54, {LOG2E:#x}")
    for c in range(4):
        a(f"s_waitcnt lgkmcnt({3-c})")
        for t in range(4):
            a(f"v_mfma_f32_16x16x32_bf16 v[{144+4*t}:{147+4*t}], v[{64+16*t+4*c}:{67+16*t+4*c}], v[{128+4*c}:{131+4*c}], v[{144+4*t}:{147+4*t}]")
    for k in range(8): a(f"v_cvt_pk_bf16_f32 v{20+k}, v{144+2*k}, v{145+2*k}")
    for k in range(8):
        a(f"v_lshlrev_b32 v{144+2*k}, 16, v{20+k}"); a(f"v_and_b32 v{145+2*k}, 0xffff0000, v{20+k}")
    for k in range(8): a(f"v_pk_mul_f32 v[{144+2*k}:{145+2*k}], v[{144+2*k}:{145+2*k}], s[52:53] op_sel_hi:[1,0]")
    for k in range(8): a(f"v_cvt_pk_bf16_f32 v{20+k}, v{144+2*k}, v{145+2*k}")
    for k in range(8):
        a(f"v_lshlrev_b32 v{144+2*k}, 16, v{20+k}"); a(f"v_and_b32 v{145+2*k}, 0xffff0000, v{20+k}")
    a("v_max3_f32 v20, v144, v145, v146")
    for k in range(147, 159, 2): a(f"v_max3_f32 v20, v20, v{k}, v{k+1}")
    a("v_max_f32 v20, v20, v159")
    xrow_red("v_max_f32", 20, 21)
    a("s_mov_b64 exec, 3")
    a(f"ds_write_b32 v54, v20 offset:{O_MX}")
    a("s_mov_b64 exec, 1")
    a(f"ds_add_u32 v4, v5 offset:{F_MAXR}")
    FULL()
    wait_flag(F_MAXR, 4)
    a(f"ds_read_b128 v[24:27], v53 offset:{O_MX}")
    a("s_waitcnt lgkmcnt(0)")
    a("v_max3_f32 v23, v24, v25, v26"); a("v_max_f32 v22, v23, v27"); a("v_max_f32 v23, v23, v27")
    for k in range(8): a(f"v_pk_add_f32 v[{144+2*k}:{145+2*k}], v[{144+2*k}:{145+2*k}], v[22:23] neg_lo:[0,1] neg_hi:[0,1]")
    for k in range(8): a(f"v_pk_mul_f32 v[{144+2*k}:{145+2*k}], v[{144+2*k}:{145+2*k}], s[54:55] op_sel_hi:[1,0]")
    for k in range(16): a(f"v_exp_f32 v{144+k}, v{144+k}")
    for k in range(8): a(f"v_cvt_pk_bf16_f32 v{24+k}, v{144+2*k}, v{145+2*k}")
    J01()
    a(f"ds_write_b128 v56, v[24:27] offset:{O_P}"); a(f"ds_write_b128 v56, v[28:31] offset:{O_P+128}")
    FULL()
    for k in range(4): a(f"v_pk_add_f32 v[{144+2*k}:{145+2*k}], v[{144+2*k}:{145+2*k}], v[{152+2*k}:{153+2*k}]")
    a("v_pk_add_f32 v[144:145], v[144:145], v[146:147]"); a("v_pk_add_f32 v[148:149], v[148:149], v[150:151]"); a("v_pk_add_f32 v[144:145], v[144:145], v[148:149]")
    a("v_add_f32 v20, v144, v145")
    xrow_red("v_add_f32", 20, 21)
    a("s_mov_b64 exec, 3")
    a(f"ds_write_b32 v54, v20 offset:{O_LS}")
    a("s_mov_b64 exec, 1")
    a(f"ds_add_u32 v4, v5 offset:{F_PRDY}")
    FULL()
    for r in range(8): a(f"v_mov_b32 v{112+r}, 0")
    wait_flag(F_PRDY, 4)
    stamp(5)
    for u in range(8): a(f"ds_read_b128 v[{64+4*u}:{67+4*u}], v55 offset:{O_P + 128*u}")
    a(f"ds_read_b128 v[24:27], v53 offset:{O_LS}")
    a("v_mov_b32 v123, v6"); a("v_mov_b32 v30, 0"); a("v_mov_b32 v31, v6"); a("v_mov_b32 v28, v23")
    a("s_waitcnt lgkmcnt(0)")
    a("v_pk_add_f32 v[24:25], v[24:25], v[26:27]"); a("v_add_f32 v29, v24, v25")
    for grp in cfg.pvgroups:
        wait_prog_s(82 + 8*(grp[-1]+1))
        for u in grp:
            fb = 160 + 8*u
            a(f"ds_read_b64_tr_b16 v[{fb}:{fb+1}], v8 offset:{8192*u}")
            a(f"ds_read_b64_tr_b16 v[{fb+2}:{fb+3}], v8 offset:{8192*u+4096}")
            a(f"ds_read_b64_tr_b16 v[{fb+4}:{fb+5}], v9 offset:{8192*u}")
            a(f"ds_read_b64_tr_b16 v[{fb+6}:{fb+7}], v9 offset:{8192*u+4096}")
        n = 4*len(grp)
        for k, u in enumerate(grp):
            fb = 160 + 8*u
            a(f"s_waitcnt lgkmcnt({min(15, n - 4*k - 2)})")
            a(f"v_mfma_f32_16x16x32_bf16 v[112:115], v[{fb}:{fb+3}], v[{64+4*u}:{67+4*u}], v[112:115]")
            a(f"s_waitcnt lgkmcnt({min(15, n - 4*k - 4)})")
            a(f"v_mfma_f32_16x16x32_bf16 v[116:119], v[{fb+4}:{fb+7}], v[{64+4*u}:{67+4*u}], v[116:119]")
    a("s_mov_b32 s52, 0xcccccccc"); a("s_mov_b32 s53, 0xcccccccc")
    for r in range(4): a(f"v_cndmask_b32 v{112+r}, v{112+r}, v{116+r}, s[52:53]")
    a("s_mov_b32 exec_lo, 0x000f000f"); a("s_mov_b32 exec_hi, 0x000f000f")
    a("v_perm_b32 v120, v112, v113, s60"); a("v_perm_b32 v121, v114, v113, s61"); a("v_perm_b32 v122, v115, v113, s62")
    a("buffer_store_dwordx4 v[120:123], v58, s[32:35], s66 offen sc1")
    a("s_cmp_eq_u32 s49, 0"); a("s_cbranch_scc0 L_noml")
    a("s_mov_b64 exec, 3")
    a("buffer_store_dwordx4 v[28:31], v59, s[32:35], s67 offen sc1")
    a("L_noml:")
    FULL()
    arrive(F_VFREE)
    stamp(6)
    if cfg.stop_after == "attn": a("s_branch L_fin")
    a("s_cmp_lt_u32 s29, 18"); a("s_cbranch_scc1 L_F")
    a("s_cmp_lt_u32 s29, 27"); a("s_cbranch_scc1 L_S")

    a("s_cmp_eq_u32 s49, 0"); a("s_cbranch_scc0 L_fin")
    a("s_mul_i32 s65, s28, 5"); a("s_add_u32 s65, s65, s29"); a("s_sub_u32 s65, s65, 27")
    a("s_cmp_lt_u32 s65, 36"); a("s_cbranch_scc0 L_fin")
    a("v_bfe_u32 v14, v1, 2, 3"); a("v_mul_u32_u24 v14, 2304, v14"); a("v_and_b32 v15, 3, v1"); a("v_lshl_add_u32 v14, v15, 4, v14")
    a("s_lshl_b32 s66, s65, 6"); a(f"s_add_u32 s66, s66, {W_C}")
    L = a.label("Lg"); a(f"{L}:")
    a("s_sleep 4")
    a("buffer_load_dwordx4 v[20:23], v14, s[32:35], s66 offen sc1")
    a("s_waitcnt vmcnt(0)")
    tagcheck([20], 36, L)
    unpack_b(24, 20)
    a("v_mov_b32 v25, v21"); a("v_mov_b32 v26, v22"); a("v_mov_b32 v23, v20")
    for s_ in (4, 8):
        for r in range(4): a(f"v_add_f32_dpp v{23+r}, v{23+r}, v{23+r} row_ror:{s_} {DPP}")
    for r in range(4): a(f"v_mov_b32 v{40+r}, v{23+r}")
    for r in range(4): a(f"v_permlane16_swap_b32 v{23+r}, v{40+r}")
    for r in range(4): a(f"v_add_f32 v{23+r}, v{23+r}, v{40+r}")
    rnd2(23, 24, 36); rnd2(25, 26, 36)
    a("v_lshlrev_b32 v28, 16, v16"); a("v_and_b32 v29, 0xffff0000, v16"); a("v_lshlrev_b32 v30, 16, v17"); a("v_and_b32 v31, 0xffff0000, v17")
    for r in range(4): a(f"v_add_f32 v{28+r}, v{28+r}, v{23+r}")
    rnd2(28, 29, 36); rnd2(30, 31, 36)
    stamp(7)
    a("v_lshlrev_b32 v14, 4, v1")
    a("s_mul_i32 s66, s65, 9216"); a(f"s_add_u32 s66, s66, {W_D}"); a("s_add_u32 s67, s66, 4096"); a("s_add_u32 s68, s66, 8192")
    a("s_lshl_b32 s69, s65, 5"); a("v_and_b32 v19, 3, v1"); a("v_lshlrev_b32 v19, 3, v19"); a("v_mov_b32 v18, 0")
    def chk(grs, acc):
        a(f"v_xor_b32 v{acc}, v{grs[0]+3}, v6")
        for gq in grs[1:]: a(f"v_bitop3_b32 v{acc}, v{gq+3}, v6, v{acc} bitop3:0xbe")
        a(f"v_cmp_ne_u32 vcc, 0, v{acc}")
    def rolling(nsets, nloads, emit, check, tail, pre=None):
        L = a.label("Lr")
        for k in range(nsets): emit(k)
        a(f"{L}:")
        for k in range(nsets):
            if pre: pre(k)
            a(f"s_waitcnt vmcnt({(nsets-1)*nloads})")
            check(k)
            a(f"s_cbranch_vccz {L}s{k}")
            emit(k)
        spin_tail(L)
        for k in range(nsets):
            a(f"{L}s{k}:")
            tail(k)
            if k < nsets - 1: a(f"s_branch {L}j")
        a(f"{L}j:")
    ZS = [64, 100, 136][:cfg.zsets]
    def z_emit(k):
        for i9 in range(9):
            q = ZS[k] + 4*i9
            a(f"buffer_load_dwordx4 v[{q}:{q+3}], v14, s[32:35], s{66+i9//4} offen offset:{1024*(i9%4)} sc1")
    def z_tail(k):
        b = ZS[k]
        stamp(8)
        for q in range(9): unpack_b(40+q, b+4*q)
        for q in range(1, 9): a(f"v_pk_add_f32 v[{b}:{b+1}], v[{b}:{b+1}], v[{b+4*q}:{b+4*q+1}]")
        for q in range(3): a(f"v_pk_add_f32 v[40:41], v[40:41], v[{42+2*q}:{43+2*q}]")
        a("v_add_f32 v33, v40, v41"); a("v_add_f32 v33, v33, v48")
        a(f"v_add_f32 v35, v{b+2}, v{b+6}")
        for q in range(2, 9): a(f"v_add_f32 v35, v35, v{b+2+4*q}")
        a(f"v_mov_b32 v32, v{b}"); a(f"v_mov_b32 v34, v{b+1}")
    rolling(len(ZS), 9, z_emit, lambda k: chk([ZS[k]+4*q for q in range(9)], 36), z_tail)
    for s_ in (4, 8):
        for r in range(4): a(f"v_add_f32_dpp v{32+r}, v{32+r}, v{32+r} row_ror:{s_} {DPP}")
    for sw in ("v_permlane16_swap_b32", "v_permlane32_swap_b32"):
        for r in range(4): a(f"v_mov_b32 v{40+r}, v{32+r}")
        for r in range(4): a(f"{sw} v{32+r}, v{40+r}")
        for r in range(0, 4, 2): a(f"v_pk_add_f32 v[{32+r}:{33+r}], v[{32+r}:{33+r}], v[{40+r}:{41+r}]")
    rnd2(32, 33, 36); rnd2(34, 35, 37)
    a("v_pk_add_f32 v[32:33], v[32:33], v[28:29]"); a("v_pk_add_f32 v[34:35], v[34:35], v[30:31]")
    a("v_cvt_pk_bf16_f32 v36, v32, v33"); a("v_cvt_pk_bf16_f32 v37, v34, v35")
    a("s_mov_b64 exec, 15")
    a("buffer_store_dwordx2 v[36:37], v19, s[40:43], s69 offen")
    a("s_cmp_eq_u32 s65, 0"); a("s_cbranch_scc0 L_noep")
    a("s_mov_b64 exec, 1")
    a(f"buffer_store_dword v6, v18, s[32:35], 0 offen offset:{W_EPOCH} sc1")
    a("L_noep:")
    FULL()
    stamp(9)
    a("s_branch L_fin")

    a("L_S:")
    a("v_lshrrev_b32 v32, 2, v2"); a("v_and_b32 v33, 3, v2")
    a("v_lshrrev_b32 v34, 1, v32"); a("v_and_b32 v35, 1, v3"); a("v_lshl_or_b32 v34, v35, 1, v34")
    a("v_lshlrev_b32 v34, 5, v34"); a("v_lshl_add_u32 v34, v33, 3, v34"); a("v_lshl_add_u32 v34, v32, 7, v34"); a("v_lshl_add_u32 v34, v3, 11, v34")
    a("s_lshl_b32 s51, s49, 14"); a("v_add_u32 v28, s51, v34")
    for T in range(1, 4): a(f"v_xor_b32 v{28+T}, {32*T}, v28")
    a("s_lshl_b32 s65, s28, 2"); a("s_add_u32 s65, s65, s49")
    a("s_lshl_b32 s66, s65, 13"); a(f"s_add_u32 s66, s66, {W_B}")
    a("s_lshl_b32 s68, s65, 11"); a(f"s_add_u32 s68, s68, {W_ML}")
    a("v_bfe_u32 v14, v1, 2, 2"); a("v_lshlrev_b32 v14, 11, v14"); a("v_lshl_add_u32 v14, v3, 6, v14"); a("v_and_b32 v35, 3, v1"); a("v_lshl_add_u32 v14, v35, 4, v14")
    a("v_lshlrev_b32 v41, 7, v2")
    a("v_lshlrev_b32 v18, 4, v2")
    a("s_lshl_b32 s51, s49, 8"); a("v_lshl_add_u32 v19, v3, 4, s51"); a("v_add_u32 v19, v19, v4")
    a("v_add_u32 v40, v18, v4")
    a("s_mul_i32 s69, s28, 2304"); a("s_sub_u32 s52, s29, 18"); a("s_lshl_b32 s52, s52, 8"); a("s_add_u32 s69, s69, s52"); a(f"s_add_u32 s69, s69, {W_C}")
    a(f"s_mov_b32 s54, {LOG2E:#x}")
    for r in range(16): a(f"v_mov_b32 v{192+r}, 0")
    a("v_mov_b32 v211, v6")
    wait_prog_s(210)
    for T in range(4):
        for ks in range(4):
            b = 64 + 16*T + 4*ks
            off = L_WQ + 8192*(ks >> 1) + 1024*(ks & 1)
            a(f"ds_read_b64_tr_b16 v[{b}:{b+1}], v{28+T} offset:{off}")
            a(f"ds_read_b64_tr_b16 v[{b+2}:{b+3}], v{28+T} offset:{off + 512}")
    stamp(7)
    SS = [128, 212][:cfg.ssets]
    def s_emit(k):
        b0 = SS[k]
        a(f"buffer_load_dwordx4 v[{b0}:{b0+3}], v41, s[32:35], s68 offen sc1")
        for b in range(2):
            for i4 in range(4):
                q = b0 + 4 + 16*b + 4*i4
                a(f"buffer_load_dwordx4 v[{q}:{q+3}], v14, s[32:35], s66 offen offset:{512*i4 + 256*b} sc1")
    def s_pre(k):
        b0 = SS[k]
        a(f"s_waitcnt vmcnt({(len(SS)-1)*9 + 8})")
        a(f"v_mov_b32 v32, v{b0}")
        row_red("v_max_f32", 32)
        a(f"v_sub_f32 v33, v{b0}, v32"); a("v_mul_f32 v33, s54, v33"); a("v_exp_f32 v33, v33")
        a(f"v_mul_f32 v34, v33, v{b0+1}")
        row_red("v_add_f32", 34)
        a("v_rcp_f32 v34, v34"); a("v_mul_f32 v33, v33, v34")
    def s_tail(k):
        b0 = SS[k]
        stamp(8)
        for q in range(8): unpack_b(164+q, b0+4+4*q)
        for i4 in range(4):
            for b in range(2):
                q = b0 + 4 + 16*b + 4*i4
                srcs = [q, 164+4*b+i4, q+1, q+2]
                for r in range(4):
                    op = "v_mul_f32_dpp" if i4 == 0 else "v_fmac_f32_dpp"
                    a(f"{op} v{172+4*b+r}, v33, v{srcs[r]} quad_perm:[{i4},{i4},{i4},{i4}] {DPP}")
    rolling(len(SS), 9, s_emit, lambda k: chk([SS[k]] + [SS[k]+4+4*q for q in range(8)], 32), s_tail, s_pre)
    for s_ in (4, 8):
        for r in range(8): a(f"v_add_f32_dpp v{172+r}, v{172+r}, v{172+r} row_ror:{s_} {DPP}")
    for b in range(2):
        a(f"v_cvt_pk_bf16_f32 v{180+2*b}, v{172+4*b}, v{173+4*b}"); a(f"v_cvt_pk_bf16_f32 v{181+2*b}, v{174+4*b}, v{175+4*b}")
    a("s_waitcnt lgkmcnt(0)")
    BR = [184, 188, 164, 168]
    def bc(ks):
        b, v = ks >> 1, ks & 1
        o = []
        for hh in range(2):
            o.append(f"v_mov_b32_dpp v{BR[ks]+2*hh}, v{180+2*b} row_newbcast:{2*v+hh} {DPP}")
            o.append(f"v_mov_b32_dpp v{BR[ks]+2*hh+1}, v{181+2*b} row_newbcast:{2*v+hh} {DPP}")
        return o
    for x in bc(0): a(x)
    for ks in range(4):
        nxt = bc(ks+1) if ks < 3 else []
        for T in range(4):
            A_ = 64 + 16*T + 4*ks
            a(f"v_mfma_f32_16x16x32_bf16 v[{192+4*T}:{195+4*T}], v[{A_}:{A_+3}], v[{BR[ks]}:{BR[ks]+3}], v[{192+4*T}:{195+4*T}]")
            if nxt: a(nxt[T])
    J0()
    for T in range(4): a(f"ds_write_b128 v19, v[{192+4*T}:{195+4*T}] offset:{O_RED + 64*T}")
    a("s_waitcnt lgkmcnt(0)")
    FULL()
    a("s_barrier")
    a("s_cmp_eq_u32 s49, 0"); a("s_cbranch_scc0 L_fin")
    for w in range(4): a(f"ds_read_b128 v[{64+4*w}:{67+4*w}], v40 offset:{O_RED + 256*w}")
    a("s_waitcnt lgkmcnt(0)")
    a("v_pk_add_f32 v[64:65], v[64:65], v[68:69]"); a("v_pk_add_f32 v[72:73], v[72:73], v[76:77]")
    a("v_pk_add_f32 v[66:67], v[66:67], v[70:71]"); a("v_pk_add_f32 v[74:75], v[74:75], v[78:79]")
    a("v_pk_add_f32 v[64:65], v[64:65], v[72:73]"); a("v_pk_add_f32 v[66:67], v[66:67], v[74:75]")
    a("s_mov_b64 exec, 0xffff")
    a("v_perm_b32 v208, v64, v65, s60"); a("v_perm_b32 v209, v66, v65, s61"); a("v_perm_b32 v210, v67, v65, s62")
    a("buffer_store_dwordx4 v[208:211], v18, s[32:35], s69 offen sc1")
    FULL()
    stamp(9)
    a("s_branch L_fin")

    a("L_F:")
    a("s_and_b32 s65, s29, 1")
    a("s_lshr_b32 s66, s29, 1"); a("s_mul_i32 s67, s28, 9"); a("s_add_u32 s66, s66, s67")
    a(f"v_add_u32 v19, 36864, v7")
    a("v_lshlrev_b32 v40, 1, v18")
    a("v_lshrrev_b32 v14, 3, v18")
    a("v_lshrrev_b32 v34, 3, v14"); a("v_lshlrev_b32 v34, 6, v34")
    a("v_and_b32 v35, 3, v14"); a("v_lshl_add_u32 v34, v35, 4, v34")
    a("v_bfe_u32 v35, v14, 2, 1"); a("v_lshl_add_u32 v34, v35, 3, v34"); a("v_add_u32 v41, v34, v4")
    a("v_lshl_add_u32 v42, v3, 4, v4")
    a("s_lshl_b32 s51, s49, 3"); a("v_add_u32 v43, s51, v4")
    a("v_and_b32 v44, 1, v3"); a("v_lshlrev_b32 v44, 4, v44")
    a("v_and_b32 v45, 1, v3"); a("v_lshlrev_b32 v45, 3, v45"); a("v_and_b32 v38, 3, v2"); a("v_lshl_add_u32 v45, v38, 1, v45")
    a("s_lshl_b32 s51, s49, 4"); a("v_add_u32 v45, s51, v45"); a("v_add_u32 v45, v45, v4")
    a("v_mul_u32_u24 v46, 36864, v2"); a("v_lshl_add_u32 v46, v3, 4, v46")
    a("v_lshrrev_b32 v28, 2, v2"); a("v_and_b32 v29, 3, v2")
    a("v_lshrrev_b32 v30, 1, v28"); a("v_and_b32 v31, 1, v3"); a("v_lshlrev_b32 v31, 1, v31"); a("v_xor_b32 v30, v30, v31")
    a("v_xor_b32 v30, s49, v30"); a("v_lshlrev_b32 v30, 5, v30"); a("v_lshl_add_u32 v30, v29, 3, v30")
    a("v_lshl_add_u32 v30, v28, 7, v30"); a("v_lshl_add_u32 v30, v3, 10, v30")
    a(f"v_add_u32 v47, {L_V}, v30"); a("v_xor_b32 v30, 64, v30"); a(f"v_add_u32 v48, {L_V+512}, v30")
    a("v_lshlrev_b32 v50, 16, v16"); a("v_and_b32 v51, 0xffff0000, v16"); a("v_lshlrev_b32 v52, 16, v17"); a("v_and_b32 v53, 0xffff0000, v17")
    a("s_lshl_b32 s67, s66, 10"); a("s_lshl_b32 s68, s49, 7"); a("s_add_u32 s67, s67, s68"); a(f"s_add_u32 s67, s67, {W_E}")
    a("s_lshl_b32 s68, s65, 9"); a("s_add_u32 s69, s67, s68")
    a("s_xor_b32 s68, s68, 512"); a("s_add_u32 s70, s67, s68")
    a("s_mul_i32 s51, s28, 18"); a("s_add_u32 s51, s51, s29"); a("s_lshl_b32 s51, s51, 6")
    a("s_mul_i32 s52, s49, 9216"); a("s_add_u32 s51, s51, s52"); a(f"s_add_u32 s68, s51, {W_D}")
    a(f"s_mov_b32 s66, {W_C}"); a(f"s_mov_b32 s67, {W_C + 4*2304}")
    a("v_add_u32 v49, 6912, v40") if False else None
    a("v_mov_b32 v24, 0x3f803f80"); a("v_mov_b32 v25, v24"); a("v_mov_b32 v26, v24"); a("v_mov_b32 v27, v24")
    for r in range(4): a(f"v_mov_b32 v{20+r}, 0"); a(f"v_mov_b32 v{54+r}, 0")
    a("v_mov_b32 v60, 0"); a("v_mov_b32 v61, 0")
    a("v_add_u32 v49, 4608, v40")
    for u in range(18):
        if u % 3 == 0: wait_prog_s(146 + 4*(u+3))
        base, off = (7, 4096*u) if u < 9 else (19, 4096*(u-9))
        a(f"ds_read_b64_tr_b16 v[{64+4*u}:{65+4*u}], v{base} offset:{L_WQ + off}")
        a(f"ds_read_b64_tr_b16 v[{66+4*u}:{67+4*u}], v{base} offset:{L_WQ + off + 2048}")
    a("s_waitcnt lgkmcnt(0)")
    for u in range(18): a(f"v_mfma_f32_16x16x32_bf16 v[54:57], v[{64+4*u}:{67+4*u}], v[24:27], v[54:57]")
    stamp(7)
    if cfg.cpoll:
        a("s_add_u32 s52, s26, %d" % (W_C + 12)); a("s_addc_u32 s53, s27, 0")
        a("s_mul_i32 s51, s49, 576"); a("s_add_u32 s52, s52, s51"); a("s_addc_u32 s53, s53, 0")
        L = a.label("Lp"); a(f"{L}:")
        for p in range(8): a(f"s_load_dword s{88+p}, s[52:53], {2304*p} glc")
        a("s_waitcnt lgkmcnt(0)")
        a("s_xor_b32 s88, s88, s48")
        for p in range(1, 8): a(f"s_xor_b32 s{88+p}, s{88+p}, s48"); a(f"s_or_b32 s88, s88, s{88+p}")
        a("s_cmp_eq_u32 s88, 0"); a(f"s_cbranch_scc1 {L}d")
        spin_tail(L); a(f"{L}d:")
    L = a.label("Lg"); a(f"{L}:")
    if cfg.csleep: a(f"s_sleep {cfg.csleep}")
    for p in range(8):
        vo = 40 if (p & 2) == 0 else 49
        a(f"buffer_load_dwordx4 v[{208+4*p}:{211+4*p}], v{vo}, s[32:35], s{66+p//4} offen offset:{2304*(p&1)} sc1")
    a("s_waitcnt vmcnt(0)")
    tagcheck([208+4*p for p in range(8)], 32, L)
    stamp(8)
    for p in range(8): unpack_b(136+p, 208+4*p)
    for p in range(1, 8): a(f"v_pk_add_f32 v[208:209], v[208:209], v[{208+4*p}:{209+4*p}]")
    for k in range(3): a(f"v_pk_add_f32 v[136:137], v[136:137], v[{138+2*k}:{139+2*k}]")
    a("v_add_f32 v33, v136, v137")
    a("v_add_f32 v35, v210, v214")
    for p in range(2, 8): a(f"v_add_f32 v35, v35, v{210+4*p}")
    a("v_cvt_pk_bf16_f32 v36, v208, v33"); a("v_cvt_pk_bf16_f32 v37, v209, v35")
    a("v_lshlrev_b32 v28, 16, v36"); a("v_and_b32 v29, 0xffff0000, v36"); a("v_lshlrev_b32 v30, 16, v37"); a("v_and_b32 v31, 0xffff0000, v37")
    a("v_pk_add_f32 v[28:29], v[28:29], v[50:51]"); a("v_pk_add_f32 v[30:31], v[30:31], v[52:53]")
    a("v_cvt_pk_bf16_f32 v36, v28, v29"); a("v_cvt_pk_bf16_f32 v37, v30, v31")
    a("s_mov_b32 exec_hi, 15")
    a(f"ds_write_b64 v41, v[36:37] offset:{O_LN2}")
    a("v_lshlrev_b32 v28, 16, v36"); a("v_and_b32 v29, 0xffff0000, v36"); a("v_lshlrev_b32 v30, 16, v37"); a("v_and_b32 v31, 0xffff0000, v37")
    a("v_readfirstlane_b32 s52, v28")
    a("v_pk_add_f32 v[28:29], v[28:29], s[52:53] op_sel_hi:[1,0] neg_lo:[0,1] neg_hi:[0,1]")
    a("v_pk_add_f32 v[30:31], v[30:31], s[52:53] op_sel_hi:[1,0] neg_lo:[0,1] neg_hi:[0,1]")
    a("v_pk_mul_f32 v[32:33], v[28:29], v[28:29]"); a("v_pk_fma_f32 v[32:33], v[30:31], v[30:31], v[32:33]")
    a("v_pk_add_f32 v[28:29], v[28:29], v[30:31]")
    a("v_add_f32 v60, v28, v29"); a("v_add_f32 v61, v32, v33")
    FULL()
    red2("v_add_f32", 60, 61, 32, 33)
    a("v_mul_f32 v32, 0x3be38e39, v60")
    a("v_fma_f32 v61, -v32, v60, v61")
    a("v_add_f32 v60, s52, v32")
    a("s_mov_b64 exec, 1")
    a(f"ds_write_b64 v43, v[60:61] offset:{O_STAT}")
    a(f"ds_add_u32 v4, v5 offset:{F_LN2}")
    FULL()
    wait_flag(F_LN2, 4)
    stamp(9)
    a(f"ds_read_b128 v[28:31], v4 offset:{O_STAT}"); a(f"ds_read_b128 v[32:35], v4 offset:{O_STAT+16}")
    for u in range(18): a(f"ds_read_b128 v[{136+4*u}:{139+4*u}], v42 offset:{O_LN2 + 64*u}")
    fin = ["v_add_f32 v36, v28, v30", "v_add_f32 v37, v32, v34", "v_add_f32 v36, v36, v37", "v_mul_f32 v36, 0x3e800000, v36",
           "v_sub_f32 v28, v28, v36", "v_sub_f32 v30, v30, v36", "v_sub_f32 v32, v32, v36", "v_sub_f32 v34, v34, v36",
           "v_mul_f32 v37, v28, v28", "v_fmac_f32 v37, v30, v30", "v_fmac_f32 v37, v32, v32", "v_fmac_f32 v37, v34, v34",
           "v_add_f32 v29, v29, v31", "v_add_f32 v33, v33, v35", "v_add_f32 v29, v29, v33",
           "v_fmac_f32 v29, 0x43100000, v37", "v_mul_f32 v37, 0x3ae38e39, v29", "v_max_f32 v37, 0, v37",
           "v_cvt_pk_bf16_f32 v38, v37, v36", "v_lshlrev_b32 v37, 16, v38", "v_and_b32 v36, 0xffff0000, v38",
           "v_add_f32 v37, 0x3727c5ac, v37", "v_cvt_pk_bf16_f32 v38, v37, v37", "v_lshlrev_b32 v37, 16, v38",
           "v_sqrt_f32 v37, v37", "v_nop", "v_cvt_pk_bf16_f32 v38, v37, v37", "v_lshlrev_b32 v37, 16, v38", "v_rcp_f32 v37, v37"]
    for u in range(18):
        if u % 2 == 0 or u == 17: a(f"s_waitcnt lgkmcnt({min(15, max(0, 16 - u))})")
        a(f"v_mfma_f32_16x16x32_bf16 v[20:23], v[{64+4*u}:{67+4*u}], v[{136+4*u}:{139+4*u}], v[20:23]")
        for _ in range(2):
            if fin and u >= 1: a(fin.pop(0))
    for x in fin: a(x)
    a("v_pk_fma_f32 v[20:21], v[54:55], v[36:37], v[20:21] op_sel_hi:[1,0,1] neg_lo:[1,0,0] neg_hi:[1,0,0]")
    a("v_pk_fma_f32 v[22:23], v[56:57], v[36:37], v[22:23] op_sel_hi:[1,0,1] neg_lo:[1,0,0] neg_hi:[1,0,0]")
    a("v_pk_mul_f32 v[20:21], v[20:21], v[36:37] op_sel:[0,1] op_sel_hi:[1,1]")
    a("v_pk_mul_f32 v[22:23], v[22:23], v[36:37] op_sel:[0,1] op_sel_hi:[1,1]")
    rnd2(20, 21, 24); rnd2(22, 23, 25)
    a("s_cmp_eq_u32 s65, 0")
    a("s_cselect_b32 exec_lo, 0, 0x00010001"); a("s_cselect_b32 exec_hi, 0x00010001, 0")
    pack_gran(24, 20)
    a("buffer_store_dwordx4 v[24:27], v44, s[32:35], s70 offen sc1")
    FULL()
    stamp(10)
    a("s_mov_b32 s52, 0x22222222"); a("s_mov_b32 s53, 0x22222222")
    a("s_mov_b32 s54, 0x44444444"); a("s_mov_b32 s55, 0x44444444")
    a("s_mov_b32 s56, 0x88888888"); a("s_mov_b32 s57, 0x88888888")
    a("s_cmp_eq_u32 s65, 0"); a("s_cselect_b64 s[58:59], 0, -1")
    a("v_cndmask_b32 v34, v20, v21, s[52:53]"); a("v_cndmask_b32 v34, v34, v22, s[54:55]"); a("v_cndmask_b32 v34, v34, v23, s[56:57]")
    for r in range(4): a(f"v_mov_b32 v{20+r}, 0")
    for ck in range(9):
        if ck % 3 == 0: wait_prog_s(218 + 4*(ck+3))
        a(f"ds_read_b64_tr_b16 v[{64+4*ck}:{65+4*ck}], v47 offset:{4096*ck}")
        a(f"ds_read_b64_tr_b16 v[{66+4*ck}:{67+4*ck}], v48 offset:{4096*ck}")
    ES = [100, 104, 108][:cfg.esets]
    rolling(len(ES), 1, lambda k: a(f"buffer_load_dwordx4 v[{ES[k]}:{ES[k]+3}], v44, s[32:35], s69 offen sc1"),
            lambda k: chk([ES[k]], 35),
            lambda k: (a(f"v_mov_b32 v24, v{ES[k]}"), a(f"v_mov_b32 v25, v{ES[k]+1}"), a(f"v_mov_b32 v26, v{ES[k]+2}")))
    stamp(11)
    unpack_b(28, 24)
    a("v_cndmask_b32 v35, v24, v28, s[52:53]"); a("v_cndmask_b32 v35, v35, v25, s[54:55]"); a("v_cndmask_b32 v35, v35, v26, s[56:57]")
    a("v_and_b32 v35, 0xffff0000, v35")
    a("v_cndmask_b32 v36, v34, v35, s[58:59]")
    a("v_cndmask_b32 v37, v35, v34, s[58:59]")
    a("v_mul_f32 v38, v36, v36"); a("v_mov_b32 v39, 1.0"); a("v_fmac_f32 v39, 0x3d372713, v38")
    a("v_mul_f32 v39, v39, v36")
    a("v_mul_f32 v39, 0xc0135761, v39")
    a("v_exp_f32 v39, v39"); a("v_add_f32 v39, 1.0, v39"); a("v_rcp_f32 v39, v39"); a("v_mul_f32 v39, v39, v36")
    rnd1(39, 38)
    a("v_mul_f32 v39, v39, v37"); a("v_cvt_pk_bf16_f32 v39, v39, v39")
    a("s_cmp_eq_u32 s65, 0")
    a("s_cselect_b32 exec_lo, 0x000f000f, 0"); a("s_cselect_b32 exec_hi, 0, 0x000f000f")
    a(f"ds_write_b16 v45, v39 offset:{O_HH}")
    a("s_mov_b32 s52, 0x00010001"); a("s_mov_b32 s53, 0x00010001")
    a("s_waitcnt lgkmcnt(0)")
    FULL()
    a("s_barrier")
    a(f"ds_read_b128 v[24:27], v42 offset:{O_HH}")
    a("v_mov_b32 v43, v6")
    a("s_waitcnt lgkmcnt(0)")
    for ck in range(9):
        B = 28 + 4*(ck & 1)
        for r in range(4): a(f"v_cndmask_b32 v{B+r}, 0, v{24+r}, s[52:53]")
        if ck < 8: a("s_lshl_b64 s[52:53], s[52:53], 1")
        a(f"v_mfma_f32_16x16x32_bf16 v[20:23], v[{64+4*ck}:{67+4*ck}], v[{B}:{B+3}], v[20:23]")
    a("s_mov_b32 exec_lo, 0x01ff01ff"); a("s_mov_b32 exec_hi, 0x01ff01ff")
    a("v_perm_b32 v40, v20, v21, s60"); a("v_perm_b32 v41, v22, v21, s61"); a("v_perm_b32 v42, v23, v21, s62")
    a("buffer_store_dwordx4 v[40:43], v46, s[32:35], s68 offen sc1")
    FULL()

    a("L_fin:")
    if cfg.debug:
        a("s_memrealtime s[96:97]")
        a("s_getreg_b32 s71, hwreg(HW_REG_XCC_ID)")
        a("s_waitcnt lgkmcnt(0) vmcnt(0)")
        a("s_mov_b64 exec, -1")
        srd(44, 26, W_SIZE + 0x100000)
        for k in range(12): a(f"v_mov_b32 v{20+k}, s{72+2*k}")
        a("v_mov_b32 v32, s96"); a("v_mov_b32 v33, s71"); a("v_mov_b32 v34, s50"); a("v_mov_b32 v35, 0")
        a("s_mul_i32 s51, s2, 5"); a("s_add_u32 s51, s51, s3"); a("s_lshl_b32 s51, s51, 6"); a(f"s_add_u32 s51, s51, {W_STAMP}")
        a("v_mov_b32 v14, 0")
        a("s_mov_b64 exec, 1")
        for k in range(4): a(f"buffer_store_dwordx4 v[{20+4*k}:{23+4*k}], v14, s[44:47], s51 offen offset:{16*k}")
    a("s_waitcnt vmcnt(0)")
    a("L_end:")
    a("s_endpgm")
    body = a.text()
    nbytes_est = 0
    head = f"""; sequential pre-LN decode layer: LN -> q -> sliding-window GQA attention -> wo -> LN -> GeGLU FFN
; @launch grid=(256,1,1) block=(320,1,1) lds={LDS_BYTES}
.amdgcn_target "amdgcn-amd-amdhsa--gfx950"
.set CODE_KB, {cfg.code_kb if hasattr(cfg, 'code_kb') else 14}
.text
.globl {NAME}
.p2align 8
.type {NAME},@function
{NAME}:
"""
    tail = '.section .rodata,"a"\n.p2align 6\n' + KD.format(name=NAME, vgpr=256, sgpr=100, accum=256)
    return head + body + tail

if __name__ == "__main__":
    dbg = "debug" in sys.argv
    s = gen(Cfg(debug=dbg))
    out = sys.argv[1] if len(sys.argv) > 1 else "sequential_preLN__sliding_block_cached__glu_gated_geglu__decode.s"
    open(out, "w").write(s)
    print("wrote", out, len(s), "bytes")
```

```python
import sys
from asmb import Asm, KD

NAME = "sequential_preLN__sliding_block_cached__glu_gated_geglu__decode_kernel"

L_WQ, L_K, L_V, L_SCR = 0, 18432, 83968, 149504
LDS_BYTES = 163840
O_PROG = 0
O_FL = 256
F_KFREE, F_VFREE, F_QRDY, F_LOC, F_MAXR, F_PRDY, F_RED, F_ST, F_LN2, F_HH = [O_FL + 4*k for k in range(10)]
O_LN1 = 512
O_Q = 1664
O_MX = 2176
O_LS = 2208
O_P = 2304
O_LN2 = 3328
O_RED = 4480
O_STAT = 5504
O_HH = 5568
W_EPOCH = 0
W_A = 0x1000
W_B = 0x20000
W_ML = 0x60000
W_C = 0x70000
W_E = 0x78000
W_D = 0x90000
W_X = 0xF0000
W_SIZE = 0x100000
W_STAMP = 0x100000
TAG_INC = 0x9E3779B9
SCALE = 0x3DB504F3
LOG2E = 0x3FB8AA3B

class Cfg:
    W = 24
    WF = 32
    WS = 40
    WS0 = 36
    nt = True
    debug = False
    budget = 60000
    prefetch_code = True
    cpoll = False
    zsets = 1
    ssets = 1
    esets = 1
    pvgroups = [[0,1,2,3],[4,5],[6],[7]]
    WF1 = 16
    NF1 = 32
    nopub = False
    transposed = False
    use_local = True
    ackstamp = False
    force_local = ''
    nopub2 = False
    nopv = False
    nogather = False
    lsleep = 0
    qsleep = 0
    noqcheck = False
    stop_after = None
    loader_only = False
    rot = 5
    csleep = 0
    def __init__(self, **k):
        for a, b in k.items(): setattr(self, a, b)

def gen(cfg):
    a = Asm()
    ntf = " nt" if cfg.nt else ""
    nstamp = [0]
    def stamp(k):
        if cfg.debug:
            a(f"s_memrealtime s[{72+2*k}:{73+2*k}]")
    def srd(d, p, size):
        a(f"s_mov_b32 s{d}, s{p}"); a(f"s_mov_b32 s{d+1}, s{p+1}")
        a(f"s_mov_b32 s{d+2}, {size}"); a(f"s_mov_b32 s{d+3}, 0x20000")
    def spin_tail(L):
        a("s_sub_u32 s50, s50, 1")
        a(f"s_cbranch_scc0 {L}")
        a("s_mov_b32 s50, 0")
    def wait_flag(off, n, vt=15, signed=False):
        L = a.label("Lw")
        a(f"{L}:")
        if cfg.lsleep: a(f"s_sleep {cfg.lsleep}")
        a(f"ds_read_b32 v{vt}, v4 offset:{off}")
        a("s_waitcnt lgkmcnt(0)")
        a(f"v_readfirstlane_b32 s51, v{vt}")
        a(f"s_cmp_ge_i32 s51, {n}")
        a(f"s_cbranch_scc1 {L}d")
        spin_tail(L)
        a(f"{L}d:")
    def arrive(off):
        a("s_mov_b64 exec, 1")
        a(f"ds_add_u32 v4, v5 offset:{off}")
        a("s_mov_b64 exec, -1")
    def row_red(op, v, steps=(8, 4, 2, 1)):
        for s in steps:
            a(f"{op}_dpp v{v}, v{v}, v{v} row_ror:{s} row_mask:0xf bank_mask:0xf")
    def xrow_red(op, v, t):
        a(f"v_mov_b32 v{t}, v{v}"); a(f"v_permlane16_swap_b32 v{v}, v{t}"); a(f"{op} v{v}, v{v}, v{t}")
        a(f"v_mov_b32 v{t}, v{v}"); a(f"v_permlane32_swap_b32 v{v}, v{t}"); a(f"{op} v{v}, v{v}, v{t}")
    def all_red(op, v, t):
        row_red(op, v); xrow_red(op, v, t)
    def rnd1(v, t):
        a(f"v_cvt_pk_bf16_f32 v{t}, v{v}, v{v}"); a(f"v_lshlrev_b32 v{v}, 16, v{t}")
    def rnd2(x, y, t):
        a(f"v_cvt_pk_bf16_f32 v{t}, v{x}, v{y}"); a(f"v_lshlrev_b32 v{x}, 16, v{t}"); a(f"v_and_b32 v{y}, 0xffff0000, v{t}")
    def pack_gran(d, q):
        a(f"v_perm_b32 v{d}, v{q}, v{q+1}, s60")
        a(f"v_perm_b32 v{d+1}, v{q+2}, v{q+1}, s61")
        a(f"v_perm_b32 v{d+2}, v{q+3}, v{q+1}, s62")
        a(f"v_mov_b32 v{d+3}, v6")
    def unpack_b(dst, gq):
        a(f"v_perm_b32 v{dst}, v{gq+2}, v{gq+1}, s63")
        a(f"v_perm_b32 v{dst}, v{dst}, v{gq}, s64")
    def tagcheck(grs, acc, L):
        a(f"v_xor_b32 v{acc}, v{grs[0]+3}, v6")
        for gq in grs[1:]:
            a(f"v_bitop3_b32 v{acc}, v{gq+3}, v6, v{acc} bitop3:0xbe")
        a(f"v_cmp_ne_u32 vcc, 0, v{acc}")
        a(f"s_cbranch_vccz {L}d")
        spin_tail(L)
        a(f"{L}d:")

    if cfg.debug:
        for k in range(72, 99): a(f"s_mov_b32 s{k}, 0")
    stamp(0)
    a("s_cmp_ge_u32 s2, 256"); a("s_cbranch_scc1 L_end")
    a("s_load_dwordx16 s[4:19], s[0:1], 0")
    a("s_load_dwordx8 s[20:27], s[0:1], 64")
    a("v_lshrrev_b32 v2, 6, v0")
    a("v_and_b32 v1, 63, v0")
    if cfg.transposed: a("s_lshr_b32 s28, s2, 5")
    else: a("s_and_b32 s28, s2, 7")
    a("v_readfirstlane_b32 s3, v2")
    if cfg.transposed: a("s_and_b32 s29, s2, 31")
    else: a("s_lshr_b32 s29, s2, 3")
    a("s_lshr_b32 s30, s29, 4"); a("s_lshl_b32 s31, s28, 1"); a("s_add_u32 s30, s30, s31")
    a("s_and_b32 s31, s29, 15")
    a(f"s_mov_b32 s50, {cfg.budget}")
    a(f"v_mov_b32 v4, {L_SCR}")
    a("s_cmp_eq_u32 s3, 0"); a("s_cbranch_scc0 L_compute")

    a("s_setprio 3")
    a("v_lshrrev_b32 v2, 3, v1"); a("v_and_b32 v3, 7, v1")
    a("v_bfe_u32 v8, v2, 1, 2"); a("v_lshlrev_b32 v8, 1, v8"); a("v_xor_b32 v3, v3, v8"); a("v_lshlrev_b32 v3, 4, v3")
    a("v_lshl_add_u32 v10, v2, 13, v3")
    a("s_lshr_b32 s64, s31, 2"); a(f"s_mul_i32 s64, s64, {144*8192}")
    a("s_and_b32 s65, s31, 3"); a("s_lshl_b32 s65, s65, 7"); a("s_add_u32 s64, s64, s65")
    a("s_lshl_b32 s65, s30, 9"); a("s_add_u32 s64, s64, s65")
    a(f"s_mov_b32 m0, {L_WQ}")
    a("s_mov_b32 s46, 4718592"); a("s_mov_b32 s47, 0x20000")
    a("s_waitcnt lgkmcnt(0)")
    a("s_mov_b32 s44, s10"); a("s_mov_b32 s45, s11")
    stamp(1)
    st = dict(W=cfg.W)
    def pub():
        a("v_add_u32 v20, 1, v20"); a("ds_write_b32 v21, v20")
    def issue(voff, soff, imm=0, wait=True):
        a(f"buffer_load_dwordx4 v{voff}, s[44:47], {soff} offen offset:{imm}{ntf} lds")
        if wait:
            a(f"s_waitcnt vmcnt({st['W']-1})"); pub()
    def loop_begin(n):
        L = a.label("Ll"); a(f"s_mov_b32 s67, {n}"); a(f"{L}:"); return L
    def loop_end(L):
        a("s_sub_u32 s67, s67, 1"); a("s_cbranch_scc0 " + L)
    loop_begin0 = loop_begin
    def loop_begin(n): return loop_begin0(n - 1)
    assert cfg.W - 1 >= 18
    L = loop_begin(6)
    for q in range(3):
        issue(10, "s64", wait=False)
        a("s_add_u32 m0, m0, 1024"); a(f"s_add_u32 s64, s64, {8*8192}")
    loop_end(L)
    stamp(6)
    a("v_mov_b32 v6, 0"); a("v_mov_b32 v7, 0")
    a("v_lshl_add_u32 v5, v1, 3, v4")
    a("ds_write_b64 v5, v[6:7]")
    a("v_mul_u32_u24 v8, 1152, v2"); a("v_add_u32 v11, v8, v3")
    a("v_xor_b32 v19, 64, v11")
    a("v_mul_u32_u24 v8, 9216, v2"); a("v_add_u32 v18, v8, v3")
    a("v_lshrrev_b32 v2, 4, v1"); a("v_and_b32 v3, 15, v1")
    a("v_xor_b32 v8, v3, v2"); a("v_lshlrev_b32 v8, 4, v8"); a("v_lshl_add_u32 v12, v2, 8, v8")
    a("v_xor_b32 v13, 64, v12"); a("v_xor_b32 v14, 0x80, v12"); a("v_xor_b32 v15, 0xc0, v12")
    a("v_lshlrev_b32 v8, 1, v2"); a("v_xor_b32 v8, v3, v8"); a("v_lshlrev_b32 v8, 4, v8"); a("v_lshl_add_u32 v16, v2, 8, v8")
    a("v_xor_b32 v17, 0x80, v16")
    a("v_lshl_add_u32 v21, v1, 2, v4")
    a(f"v_mov_b32 v20, {18-(cfg.W-1)}")
    a("s_lshl_b32 s65, s30, 24"); a(f"s_add_u32 s65, s65, {61440*256}")
    a("s_lshl_b32 s66, s31, 16"); a("s_add_u32 s65, s65, s66")
    if cfg.rot:
        a(f"s_mul_i32 s69, s2, {cfg.rot}"); a("s_lshr_b32 s70, s69, 4"); a("s_add_u32 s69, s69, s70"); a("s_and_b32 s69, s69, 15"); a("s_lshl_b32 s69, s69, 12")
    else:
        a("s_mov_b32 s69, 0")
    a("s_waitcnt lgkmcnt(0)")
    a("s_barrier")
    stamp(7)
    def kv(ptr, lds, vo, nv):
        srd(44, ptr, 0x10000000)
        a(f"s_mov_b32 m0, {lds}"); a("s_mov_b32 s68, s69")
        L = loop_begin(16)
        a("s_add_u32 s66, s65, s68")
        for q in range(4): issue(vo + (q % nv), "s66", q*1024)
        a("s_add_u32 m0, m0, 4096"); a("s_add_u32 s68, s68, 4096"); a("s_and_b32 s68, s68, 0xffff")
        loop_end(L)
    def kvphases():
        kv(6, L_K, 12, 4)
        stamp(2)
        kv(8, L_V, 16, 2)
        stamp(3)
    a("s_cmp_lt_u32 s29, 18"); a("s_cbranch_scc1 L_ldA")
    a("s_cmp_lt_u32 s29, 27"); a("s_cbranch_scc1 L_ldS0")
    a("L_ldA:")
    kvphases()
    def lwait_flag(off, n):
        L = a.label("Lw")
        a(f"{L}:")
        a(f"ds_read_b32 v22, v4 offset:{off}")
        a("s_waitcnt lgkmcnt(0)")
        a("v_readfirstlane_b32 s51, v22")
        a(f"s_cmp_ge_i32 s51, {n}")
        a(f"s_cbranch_scc1 {L}d")
        spin_tail(L)
        a(f"{L}d:")
    def widen_issue(newW, emit_one):
        for k in range(newW - st['W']): emit_one(False)
        st['W'] = newW
    def drain():
        for k in range(st['W']-2, -1, -1):
            a(f"s_waitcnt vmcnt({k})"); pub()
    a("s_cmp_lt_u32 s29, 18"); a("s_cbranch_scc1 L_ldF")
    st['W'] = cfg.W
    drain()
    a("s_branch L_ldEnd")
    a("L_ldS0:")
    st['W'] = cfg.WS0
    a(f"v_mov_b32 v20, {18-(cfg.WS0-1)}")
    kvphases()
    lwait_flag(F_KFREE, 4)
    srd(44, 12, 4718592)
    a("s_sub_u32 s66, s29, 18"); a("s_lshl_b32 s66, s66, 7"); a(f"s_mul_i32 s68, s28, {512*1152}"); a("s_add_u32 s66, s66, s68")
    a(f"s_mov_b32 m0, {L_WQ}")
    a("v_lshrrev_b32 v2, 3, v1"); a("v_and_b32 v3, 7, v1"); a("v_bfe_u32 v8, v2, 1, 1"); a("v_lshlrev_b32 v8, 1, v8"); a("v_xor_b32 v3, v3, v8")
    a("v_lshlrev_b32 v3, 4, v3"); a("v_mul_u32_u24 v8, 1152, v2"); a("v_add_u32 v24, v8, v3"); a("v_xor_b32 v23, 64, v24")
    cnt = [0]
    def one_wo(wait):
        issue(23 if (cnt[0] >> 1) & 1 else 24, "s66", wait=wait); a("s_add_u32 m0, m0, 1024"); a(f"s_add_u32 s66, s66, {8*1152}")
        cnt[0] += 1
    ex = (cfg.WS - st['W'] + 3) // 4 * 4 if cfg.WS > st['W'] else 0
    widen_issue(st['W'] + ex, one_wo)
    L = loop_begin((64 - ex) // 4)
    for q in range(4): one_wo(True)
    loop_end(L)
    drain()
    a("s_branch L_ldEnd")
    a("L_ldF:")
    st['W'] = cfg.W
    lwait_flag(F_KFREE, 4)
    srd(44, 16, 5308416)
    a("s_bitcmp1_b32 s29, 0"); a("s_cselect_b32 s44, s18, s16"); a("s_cselect_b32 s45, s19, s17")
    a("s_lshr_b32 s68, s29, 1"); a("s_mul_i32 s69, s28, 9"); a("s_add_u32 s68, s68, s69")
    a("s_lshl_b32 s66, s68, 7")
    a(f"s_mov_b32 m0, {L_WQ}")
    def one_m(wait):
        issue(18, "s66", wait=wait); a("s_add_u32 m0, m0, 1024"); a(f"s_add_u32 s66, s66, {8*9216}")
    if cfg.WF1 and cfg.WF1 < cfg.W:
        for k in range(cfg.W - cfg.WF1):
            a(f"s_waitcnt vmcnt({cfg.W - 2 - k})"); pub()
        st['W'] = cfg.WF1
        L = loop_begin(cfg.NF1); one_m(True); loop_end(L)
        done = cfg.NF1
    else:
        done = 0
    ex = cfg.WF - st['W']
    widen_issue(cfg.WF, one_m)
    L = loop_begin(72 - done - ex); one_m(True); loop_end(L)
    stamp(4)
    lwait_flag(F_VFREE, 4)
    srd(44, 20, 5308416)
    a("s_and_b32 s69, s29, 1"); a("s_lshl_b32 s69, s69, 3"); a("s_lshl_b32 s68, s68, 6"); a("s_add_u32 s68, s68, s69")
    a("s_mul_i32 s66, s68, 1152")
    a(f"s_mov_b32 m0, {L_V}")
    L = loop_begin(9)
    for o in range(4):
        a(f"s_add_u32 s68, s66, {o*16*1152}")
        issue(19 if (o & 1) else 11, "s68")
        a("s_add_u32 m0, m0, 1024")
    a("s_add_u32 s66, s66, 128")
    loop_end(L)
    drain()
    a("L_ldEnd:")
    stamp(5)
    a("s_branch L_fin")

    DPP = "row_mask:0xf bank_mask:0xf"
    J0 = lambda: (a("s_mov_b32 exec_lo, 0x00010001"), a("s_mov_b32 exec_hi, 0x00010001"))
    J01 = lambda: (a("s_mov_b32 exec_lo, 0x00030003"), a("s_mov_b32 exec_hi, 0x00030003"))
    FULL = lambda: a("s_mov_b64 exec, -1")
    def wait_prog_s(thr):
        L = a.label("Lw")
        a(f"s_cmp_ge_i32 s47, {thr}"); a(f"s_cbranch_scc1 {L}d")
        a(f"{L}:")
        if cfg.lsleep: a(f"s_sleep {cfg.lsleep}")
        a(f"ds_read_b32 v15, v4 offset:{O_PROG}"); a("s_waitcnt lgkmcnt(0)"); a("v_readfirstlane_b32 s47, v15")
        a(f"s_cmp_ge_i32 s47, {thr}"); a(f"s_cbranch_scc1 {L}d"); spin_tail(L); a(f"{L}d:")
    def red2(op, x, y, tx, ty):
        for s_ in (8, 4, 2, 1):
            a(f"{op}_dpp v{x}, v{x}, v{x} row_ror:{s_} {DPP}"); a(f"{op}_dpp v{y}, v{y}, v{y} row_ror:{s_} {DPP}")
        for sw in ("v_permlane16_swap_b32", "v_permlane32_swap_b32"):
            a(f"v_mov_b32 v{tx}, v{x}"); a(f"v_mov_b32 v{ty}, v{y}")
            a(f"{sw} v{x}, v{tx}"); a(f"{sw} v{y}, v{ty}")
            a(f"{op} v{x}, v{x}, v{tx}"); a(f"{op} v{y}, v{y}, v{ty}")
    def ln_final(mean, var, t):
        a(f"v_max_f32 v{var}, 0, v{var}")
        a(f"v_cvt_pk_bf16_f32 v{t}, v{var}, v{mean}")
        a(f"v_lshlrev_b32 v{var}, 16, v{t}"); a(f"v_and_b32 v{mean}, 0xffff0000, v{t}")
        a(f"v_add_f32 v{var}, 0x3727c5ac, v{var}"); rnd1(var, t)
        a(f"v_sqrt_f32 v{var}, v{var}"); rnd1(var, t); a(f"v_rcp_f32 v{var}, v{var}")

    def chk(grs, acc):
        a(f"v_xor_b32 v{acc}, v{grs[0]+3}, v6")
        for gq in grs[1:]: a(f"v_bitop3_b32 v{acc}, v{gq+3}, v6, v{acc} bitop3:0xbe")
        a(f"v_cmp_ne_u32 vcc, 0, v{acc}")
    def lstore(txt, key):
        if key in cfg.force_local:
            a(txt); return
        if not cfg.use_local:
            a(txt + " sc1"); return
        L = a.label("Ls")
        a("s_cmp_eq_u32 s45, 1"); a(f"s_cbranch_scc1 {L}p")
        a(txt + " sc1"); a(f"s_branch {L}q")
        a(f"{L}p:"); a(txt); a(f"{L}q:")
    a("L_compute:")
    a("s_sub_u32 s49, s3, 1")
    a("s_mov_b32 s47, -1000")
    if cfg.debug: a("s_mov_b32 s46, 0")
    a("v_and_b32 v2, 15, v1"); a("v_lshrrev_b32 v3, 4, v1")
    a("v_mov_b32 v5, 1")
    a("s_mov_b32 s60, 0x07060501"); a("s_mov_b32 s61, 0x07060502"); a("s_mov_b32 s62, 0x07060503")
    a("s_mov_b32 s63, 0x04000c0c"); a("s_mov_b32 s64, 0x0706000c")
    a("v_lshlrev_b32 v14, 5, v1")
    a("v_min_u32 v15, 35, v1"); a("s_mul_i32 s51, s49, 36"); a("v_add_u32 v15, s51, v15"); a("v_lshlrev_b32 v18, 3, v15")
    a("s_mul_i32 s52, s28, 5"); a("s_add_u32 s52, s52, s29"); a("s_sub_u32 s52, s52, 27")
    a("s_lshl_b32 s53, s52, 5"); a("v_and_b32 v19, 3, v1"); a("v_lshl_add_u32 v19, v19, 3, s53")
    a("s_cmp_ge_u32 s29, 27"); a("s_cselect_b64 s[56:57], -1, 0")
    a("v_cndmask_b32 v18, v18, v19, s[56:57]")
    a("s_waitcnt lgkmcnt(0)")
    srd(36, 4, 1152)
    a("buffer_load_dwordx4 v[20:23], v14, s[36:39], 0 offen")
    a("buffer_load_dwordx4 v[24:27], v14, s[36:39], 0 offen offset:16")
    a("buffer_load_dwordx2 v[16:17], v18, s[36:39], 0 offen")
    a("s_load_dword s48, s[26:27], 0")
    a("s_mov_b32 s71, 0")
    if cfg.prefetch_code:
        a("s_cmp_eq_u32 s29, 31"); a("s_cbranch_scc0 L_nopf")
        a("s_cmp_eq_u32 s49, 3"); a("s_cbranch_scc0 L_nopf")
        a("s_mov_b32 s71, 1")
        a("s_getpc_b64 s[52:53]")
        a("s_and_b32 s52, s52, 0xffffff00")
        a("v_lshlrev_b32 v15, 4, v1")
        a("s_mov_b32 s51, CODE_KB")
        a("L_pfl:")
        a("global_load_dwordx4 v[252:255], v15, s[52:53]")
        a("v_add_u32 v15, 1024, v15")
        a("s_sub_u32 s51, s51, 1"); a("s_cmp_lg_u32 s51, 0"); a("s_cbranch_scc1 L_pfl")
        a("L_nopf:")
    a("s_barrier")
    if cfg.loader_only:
        arrive(F_KFREE); arrive(F_VFREE); a("s_branch L_fin")
    srd(32, 26, W_SIZE + (0x100000 if cfg.debug else 0)); srd(40, 22, 1152)
    a("v_lshrrev_b32 v28, 2, v2"); a("v_and_b32 v29, 3, v2")
    a("v_and_b32 v30, 1, v3"); a("v_lshrrev_b32 v31, 1, v3")
    a("v_lshl_add_u32 v32, v30, 2, v28")
    a("v_lshrrev_b32 v33, 1, v32")
    a("v_xor_b32 v33, s49, v33"); a("v_lshlrev_b32 v33, 5, v33")
    a("v_lshl_add_u32 v33, v29, 3, v33")
    a("v_lshl_add_u32 v33, v32, 7, v33")
    a("v_lshl_add_u32 v7, v31, 10, v33")
    a("v_lshl_add_u32 v33, v3, 2, v28")
    a("s_lshl_b32 s51, s49, 1"); a("v_xor_b32 v34, s51, v32"); a("v_lshlrev_b32 v34, 5, v34")
    a("v_lshl_add_u32 v34, v29, 3, v34"); a("v_lshl_add_u32 v34, v33, 8, v34")
    a(f"v_add_u32 v8, {L_V}, v34"); a("v_xor_b32 v34, 32, v34"); a(f"v_add_u32 v9, {L_V}, v34")
    a("v_xor_b32 v33, v3, v2"); a("v_lshlrev_b32 v33, 4, v33"); a("v_lshl_add_u32 v33, v2, 8, v33")
    a("s_lshl_b32 s51, s49, 14"); a(f"s_add_u32 s51, s51, {L_K}")
    for c in range(4):
        if c: a(f"v_xor_b32 v34, {64*c}, v33"); a(f"v_add_u32 v{10+c}, s51, v34")
        else: a("v_add_u32 v10, s51, v33")
    a(f"v_add_u32 v50, {O_LN1}, v14"); a("v_add_u32 v50, v50, v4")
    a("s_lshr_b32 s51, s31, 2"); a("s_mul_i32 s51, s51, 288"); a(f"s_add_u32 s51, s51, {L_SCR+O_LN1}")
    a("v_lshl_add_u32 v51, v3, 3, s51")
    a("v_and_b32 v33, 1, v2")
    a("v_lshlrev_b32 v34, 8, v33"); a("v_lshl_add_u32 v34, v3, 4, v34"); a("v_add_u32 v52, v34, v4")
    a("v_lshl_add_u32 v53, v33, 4, v4"); a("s_lshl_b32 s51, s49, 2"); a("v_add_u32 v54, s51, v53")
    a("v_lshl_add_u32 v55, v3, 5, v53"); a("s_lshl_b32 s51, s49, 8"); a("v_add_u32 v56, s51, v55")
    a("s_lshl_b32 s65, s30, 2"); a("s_lshr_b32 s52, s31, 2"); a("s_add_u32 s65, s65, s52"); a("s_lshl_b32 s65, s65, 10")
    a("s_and_b32 s52, s31, 3"); a("s_lshl_b32 s52, s52, 8"); a("s_add_u32 s65, s65, s52")
    a("s_lshl_b32 s52, s49, 6"); a("s_add_u32 s65, s65, s52"); a(f"s_add_u32 s65, s65, {W_A}")
    a("v_lshlrev_b32 v57, 4, v3")
    a("s_lshl_b32 s66, s30, 14"); a("s_lshl_b32 s52, s31, 9"); a("s_add_u32 s66, s66, s52")
    a("s_lshl_b32 s52, s49, 7"); a("s_add_u32 s66, s66, s52"); a(f"s_add_u32 s66, s66, {W_B}")
    a("v_and_b32 v58, 1, v2"); a("v_lshlrev_b32 v58, 13, v58"); a("v_bfe_u32 v33, v2, 1, 1"); a("v_lshl_add_u32 v58, v33, 6, v58"); a("v_lshl_add_u32 v58, v3, 4, v58")
    a("s_lshl_b32 s67, s30, 12"); a("s_lshl_b32 s52, s31, 7"); a("s_add_u32 s67, s67, s52"); a(f"s_add_u32 s67, s67, {W_ML}")
    a("v_lshlrev_b32 v59, 11, v2")
    a("s_lshl_b32 s68, s30, 12"); a(f"s_add_u32 s68, s68, {W_A}")
    a("s_lshl_b32 s69, s49, 4"); a("s_add_u32 s69, s69, 34")
    a("v_mov_b32 v44, 0"); a("v_mov_b32 v45, 0")
    a("s_waitcnt lgkmcnt(0)")
    a(f"s_add_u32 s48, s48, {TAG_INC}")
    a("v_mov_b32 v6, s48")
    if cfg.use_local:
        a("s_getreg_b32 s44, hwreg(HW_REG_XCC_ID, 0, 4)")
        a("s_lshl_b32 s51, s28, 12"); a(f"s_add_u32 s70, s51, {W_X}")
        a("v_and_b32 v232, 31, v1"); a("v_lshlrev_b32 v232, 7, v232"); a("v_mov_b32 v89, 0")
        a("s_cmp_eq_u32 s49, 2"); a("s_cbranch_scc0 L_nox")
        a("s_lshl_b32 s51, s29, 7"); a("s_add_u32 s51, s51, s70")
        a("v_mov_b32 v60, s44"); a("v_mov_b32 v61, 0"); a("v_mov_b32 v62, 0"); a("v_mov_b32 v63, v6")
        a("s_mov_b64 exec, 1")
        a("buffer_store_dwordx4 v[60:63], v89, s[32:35], s51 offen sc1")
        FULL()
        a("s_waitcnt vmcnt(1)"); a("s_branch L_xw1")
        a("L_nox:")
    a("s_cmp_eq_u32 s71, 0"); a("s_cbranch_scc1 L_xw0")
    a("s_waitcnt vmcnt(CODE_KB)"); a("s_branch L_xw1")
    a("L_xw0:"); a("s_waitcnt vmcnt(0)"); a("L_xw1:")
    stamp(1)
    a("v_lshlrev_b32 v28, 16, v20")
    a("v_and_b32 v29, 0xffff0000, v20")
    a("v_readfirstlane_b32 s52, v28")
    for k in range(1, 8):
        a(f"v_lshlrev_b32 v{28+2*k}, 16, v{20+k}"); a(f"v_and_b32 v{29+2*k}, 0xffff0000, v{20+k}")
    a("s_mov_b32 exec_hi, 15")
    for k in range(8): a(f"v_pk_add_f32 v[{64+2*k}:{65+2*k}], v[{28+2*k}:{29+2*k}], s[52:53] op_sel_hi:[1,0] neg_lo:[0,1] neg_hi:[0,1]")
    a("v_pk_mul_f32 v[46:47], v[64:65], v[64:65]")
    for k in range(1, 8): a(f"v_pk_fma_f32 v[46:47], v[{64+2*k}:{65+2*k}], v[{64+2*k}:{65+2*k}], v[46:47]")
    for k in range(4): a(f"v_pk_add_f32 v[{64+2*k}:{65+2*k}], v[{64+2*k}:{65+2*k}], v[{72+2*k}:{73+2*k}]")
    a("v_pk_add_f32 v[64:65], v[64:65], v[66:67]"); a("v_pk_add_f32 v[68:69], v[68:69], v[70:71]"); a("v_pk_add_f32 v[64:65], v[64:65], v[68:69]")
    a("v_add_f32 v44, v64, v65"); a("v_add_f32 v45, v46, v47")
    FULL()
    red2("v_add_f32", 44, 45, 46, 47)
    a("v_mul_f32 v44, 0x3ae38e39, v44"); a("v_mul_f32 v45, 0x3ae38e39, v45")
    a("v_fma_f32 v45, -v44, v44, v45"); a("v_add_f32 v44, s52, v44")
    ln_final(44, 45, 46)
    for k in range(8): a(f"v_pk_add_f32 v[{28+2*k}:{29+2*k}], v[{28+2*k}:{29+2*k}], v[44:45] op_sel_hi:[1,0] neg_lo:[0,1] neg_hi:[0,1]")
    for k in range(8): a(f"v_cvt_pk_bf16_f32 v{20+k}, v{28+2*k}, v{29+2*k}")
    for k in range(8):
        a(f"v_lshlrev_b32 v{28+2*k}, 16, v{20+k}"); a(f"v_and_b32 v{29+2*k}, 0xffff0000, v{20+k}")
    for k in range(8): a(f"v_pk_mul_f32 v[{28+2*k}:{29+2*k}], v[{28+2*k}:{29+2*k}], v[44:45] op_sel:[0,1] op_sel_hi:[1,1]")
    for k in range(8): a(f"v_cvt_pk_bf16_f32 v{20+k}, v{28+2*k}, v{29+2*k}")
    a("s_mov_b32 exec_hi, 15")
    a("ds_write_b128 v50, v[20:23]"); a("ds_write_b128 v50, v[24:27] offset:16")
    FULL()
    stamp(2)
    for r in range(4): a(f"v_mov_b32 v{60+r}, 0")
    wait_prog_s(18)
    for t in range(9):
        a(f"ds_read_b64 v[{20+2*t}:{21+2*t}], v51 offset:{32*t}")
        a(f"ds_read_b64_tr_b16 v[{64+2*t}:{65+2*t}], v7 offset:{L_WQ + 2048*t}")
    for t in range(9):
        if t in (0, 3, 6): a(f"s_waitcnt lgkmcnt({min(15, 2*(6-t))})")
        a(f"v_mfma_f32_16x16x16_bf16 v[60:63], v[{64+2*t}:{65+2*t}], v[{20+2*t}:{21+2*t}], v[60:63]")
    pack_gran(224, 60)
    J0()
    QST = "buffer_store_dwordx4 v[224:227], v57, s[32:35], s65 offen"
    if not cfg.nopub: a(QST if (cfg.use_local or "A" in cfg.force_local) else QST + " sc1")
    FULL()
    a("s_mov_b32 s45, 0")
    if cfg.use_local:
        a("s_cmp_eq_u32 s49, 2"); a("s_cbranch_scc0 L_nox2")
        a("buffer_load_dwordx4 v[228:231], v232, s[32:35], s70 offen sc1")
        a("L_nox2:")
    def restore_q():
        J0(); a(QST + " sc1"); FULL()
    def loc_check(vreg):
        L = a.label("Lc")
        a(f"v_readfirstlane_b32 s52, v{vreg}")
        a("s_cmp_lg_u32 s45, 0"); a(f"s_cbranch_scc1 {L}")
        a("s_mov_b32 s45, s52")
        a("s_cmp_eq_u32 s52, 2"); a(f"s_cbranch_scc0 {L}")
        restore_q()
        a(f"{L}:")
    stamp(3)
    wait_prog_s("s69")
    for t in range(4):
        for c in range(4):
            a(f"ds_read_b128 v[{64+16*t+4*c}:{67+16*t+4*c}], v{10+c} offset:{4096*t}")
    a("s_waitcnt lgkmcnt(0)")
    arrive(F_KFREE)
    if cfg.use_local:
        a("s_cmp_eq_u32 s49, 2"); a("s_cbranch_scc0 L_nox3")
        L = a.label("Lx"); a(f"{L}:")
        a("s_waitcnt vmcnt(0)")
        a("v_cmp_ne_u32 vcc, v231, v6"); a(f"s_cbranch_vccz {L}d")
        a("buffer_load_dwordx4 v[228:231], v232, s[32:35], s70 offen sc1")
        spin_tail(L)
        a(f"{L}d:")
        a("v_cmp_ne_u32 vcc, s44, v228"); a("v_cmp_ne_u32 s[56:57], v231, v6"); a("s_or_b64 vcc, vcc, s[56:57]")
        a("s_cmp_eq_u64 vcc, 0"); a("s_cselect_b32 s51, 1, 2")
        a("v_mov_b32 v228, s51")
        a("s_mov_b64 exec, 1")
        a(f"ds_write_b32 v4, v228 offset:{F_LOC}")
        FULL()
        a("L_nox3:")
    a("s_cmp_eq_u32 s49, 0"); a("s_cbranch_scc0 L_noq")
    a("v_lshlrev_b32 v14, 4, v1"); a("v_lshlrev_b32 v19, 3, v1"); a("v_add_u32 v19, v19, v4")
    L = a.label("Lg"); a(f"{L}:")
    if cfg.qsleep: a(f"s_sleep {cfg.qsleep}")
    if not cfg.nogather:
        for kp in range(4): a(f"buffer_load_dwordx4 v[{20+4*kp}:{23+4*kp}], v14, s[32:35], s68 offen offset:{1024*kp} sc1")
    if cfg.use_local: a(f"ds_read_b32 v37, v4 offset:{F_LOC}")
    a("s_waitcnt vmcnt(0) lgkmcnt(0)")
    if not cfg.noqcheck:
        chk([20, 24, 28, 32], 36)
        a(f"s_cbranch_vccz {L}d")
        if cfg.use_local: loc_check(37)
        spin_tail(L)
        a(f"{L}d:")
    for kp in range(4): unpack_b(40+kp, 20+4*kp)
    a("v_pk_add_f32 v[20:21], v[20:21], v[24:25]"); a("v_pk_add_f32 v[28:29], v[28:29], v[32:33]"); a("v_pk_add_f32 v[20:21], v[20:21], v[28:29]")
    a("v_pk_add_f32 v[40:41], v[40:41], v[42:43]"); a("v_add_f32 v40, v40, v41")
    a("v_add_f32 v22, v22, v26"); a("v_add_f32 v30, v30, v34"); a("v_add_f32 v22, v22, v30")
    a("v_cvt_pk_bf16_f32 v48, v20, v40"); a("v_cvt_pk_bf16_f32 v49, v21, v22")
    a(f"ds_write_b64 v19, v[48:49] offset:{O_Q}")
    arrive(F_QRDY)
    a("L_noq:")
    if cfg.use_local:
        L = a.label("Lq"); a(f"{L}:")
        a(f"ds_read_b64 v[36:37], v4 offset:{F_QRDY}"); a("s_waitcnt lgkmcnt(0)")
        loc_check(37)
        a("v_readfirstlane_b32 s51, v36"); a("s_cmp_ge_i32 s51, 1"); a(f"s_cbranch_scc1 {L}d")
        spin_tail(L)
        a(f"{L}d:")
    for r in range(16): a(f"v_mov_b32 v{144+r}, 0")
    if not cfg.use_local: wait_flag(F_QRDY, 1)
    stamp(4)
    for c in range(4): a(f"ds_read_b128 v[{128+4*c}:{131+4*c}], v52 offset:{O_Q + 64*c}")
    a(f"s_mov_b32 s52, {SCALE:#x}"); a(f"s_mov_b32 s54, {LOG2E:#x}")
    for c in range(4):
        a(f"s_waitcnt lgkmcnt({3-c})")
        for t in range(4):
            a(f"v_mfma_f32_16x16x32_bf16 v[{144+4*t}:{147+4*t}], v[{64+16*t+4*c}:{67+16*t+4*c}], v[{128+4*c}:{131+4*c}], v[{144+4*t}:{147+4*t}]")
    for k in range(8): a(f"v_cvt_pk_bf16_f32 v{20+k}, v{144+2*k}, v{145+2*k}")
    for k in range(8):
        a(f"v_lshlrev_b32 v{144+2*k}, 16, v{20+k}"); a(f"v_and_b32 v{145+2*k}, 0xffff0000, v{20+k}")
    for k in range(8): a(f"v_pk_mul_f32 v[{144+2*k}:{145+2*k}], v[{144+2*k}:{145+2*k}], s[52:53] op_sel_hi:[1,0]")
    for k in range(8): a(f"v_cvt_pk_bf16_f32 v{20+k}, v{144+2*k}, v{145+2*k}")
    for k in range(8):
        a(f"v_lshlrev_b32 v{144+2*k}, 16, v{20+k}"); a(f"v_and_b32 v{145+2*k}, 0xffff0000, v{20+k}")
    a("v_max3_f32 v20, v144, v145, v146")
    for k in range(147, 159, 2): a(f"v_max3_f32 v20, v20, v{k}, v{k+1}")
    a("v_max_f32 v20, v20, v159")
    xrow_red("v_max_f32", 20, 21)
    a("s_mov_b64 exec, 3")
    a(f"ds_write_b32 v54, v20 offset:{O_MX}")
    a("s_mov_b64 exec, 1")
    a(f"ds_add_u32 v4, v5 offset:{F_MAXR}")
    FULL()
    wait_flag(F_MAXR, 4)
    a(f"ds_read_b128 v[24:27], v53 offset:{O_MX}")
    a("s_waitcnt lgkmcnt(0)")
    a("v_max3_f32 v23, v24, v25, v26"); a("v_max_f32 v22, v23, v27"); a("v_max_f32 v23, v23, v27")
    for k in range(8): a(f"v_pk_add_f32 v[{144+2*k}:{145+2*k}], v[{144+2*k}:{145+2*k}], v[22:23] neg_lo:[0,1] neg_hi:[0,1]")
    for k in range(8): a(f"v_pk_mul_f32 v[{144+2*k}:{145+2*k}], v[{144+2*k}:{145+2*k}], s[54:55] op_sel_hi:[1,0]")
    for k in range(16): a(f"v_exp_f32 v{144+k}, v{144+k}")
    for k in range(8): a(f"v_cvt_pk_bf16_f32 v{24+k}, v{144+2*k}, v{145+2*k}")
    J01()
    a(f"ds_write_b128 v56, v[24:27] offset:{O_P}"); a(f"ds_write_b128 v56, v[28:31] offset:{O_P+128}")
    FULL()
    for k in range(4): a(f"v_pk_add_f32 v[{144+2*k}:{145+2*k}], v[{144+2*k}:{145+2*k}], v[{152+2*k}:{153+2*k}]")
    a("v_pk_add_f32 v[144:145], v[144:145], v[146:147]"); a("v_pk_add_f32 v[148:149], v[148:149], v[150:151]"); a("v_pk_add_f32 v[144:145], v[144:145], v[148:149]")
    a("v_add_f32 v20, v144, v145")
    xrow_red("v_add_f32", 20, 21)
    a("s_mov_b64 exec, 3")
    a(f"ds_write_b32 v54, v20 offset:{O_LS}")
    a("s_mov_b64 exec, 1")
    a(f"ds_add_u32 v4, v5 offset:{F_PRDY}")
    FULL()
    for r in range(8): a(f"v_mov_b32 v{112+r}, 0")
    wait_flag(F_PRDY, 4)
    stamp(5)
    if cfg.use_local:
        L = a.label("Lq"); a(f"{L}:")
        a("s_cmp_lg_u32 s45, 0"); a(f"s_cbranch_scc1 {L}d")
        a(f"ds_read_b32 v37, v4 offset:{F_LOC}"); a("s_waitcnt lgkmcnt(0)")
        loc_check(37)
        spin_tail(L)
        a(f"{L}d:")
    for u in range(8): a(f"ds_read_b128 v[{64+4*u}:{67+4*u}], v55 offset:{O_P + 128*u}")
    a(f"ds_read_b128 v[24:27], v53 offset:{O_LS}")
    a("v_mov_b32 v123, v6"); a("v_mov_b32 v30, 0"); a("v_mov_b32 v31, v6"); a("v_mov_b32 v28, v23")
    a("s_waitcnt lgkmcnt(0)")
    a("v_pk_add_f32 v[24:25], v[24:25], v[26:27]"); a("v_add_f32 v29, v24, v25")
    for grp in ([] if cfg.nopv else cfg.pvgroups):
        wait_prog_s(82 + 8*(grp[-1]+1))
        for u in grp:
            fb = 160 + 8*u
            a(f"ds_read_b64_tr_b16 v[{fb}:{fb+1}], v8 offset:{8192*u}")
            a(f"ds_read_b64_tr_b16 v[{fb+2}:{fb+3}], v8 offset:{8192*u+4096}")
            a(f"ds_read_b64_tr_b16 v[{fb+4}:{fb+5}], v9 offset:{8192*u}")
            a(f"ds_read_b64_tr_b16 v[{fb+6}:{fb+7}], v9 offset:{8192*u+4096}")
        n = 4*len(grp)
        for k, u in enumerate(grp):
            fb = 160 + 8*u
            a(f"s_waitcnt lgkmcnt({min(15, n - 4*k - 2)})")
            a(f"v_mfma_f32_16x16x32_bf16 v[112:115], v[{fb}:{fb+3}], v[{64+4*u}:{67+4*u}], v[112:115]")
            a(f"s_waitcnt lgkmcnt({min(15, n - 4*k - 4)})")
            a(f"v_mfma_f32_16x16x32_bf16 v[116:119], v[{fb+4}:{fb+7}], v[{64+4*u}:{67+4*u}], v[116:119]")
    a("s_mov_b32 s52, 0xcccccccc"); a("s_mov_b32 s53, 0xcccccccc")
    for r in range(4): a(f"v_cndmask_b32 v{112+r}, v{112+r}, v{116+r}, s[52:53]")
    a("s_mov_b32 exec_lo, 0x000f000f"); a("s_mov_b32 exec_hi, 0x000f000f")
    a("v_perm_b32 v120, v112, v113, s60"); a("v_perm_b32 v121, v114, v113, s61"); a("v_perm_b32 v122, v115, v113, s62")
    if not cfg.nopub2: lstore("buffer_store_dwordx4 v[120:123], v58, s[32:35], s66 offen", "B")
    a("s_cmp_eq_u32 s49, 0"); a("s_cbranch_scc0 L_noml")
    a("s_mov_b64 exec, 3")
    if not cfg.nopub2: lstore("buffer_store_dwordx4 v[28:31], v59, s[32:35], s67 offen", "B")
    a("L_noml:")
    FULL()
    arrive(F_VFREE)
    stamp(6)
    if cfg.ackstamp:
        a("s_waitcnt vmcnt(0)"); stamp(2)
    if cfg.stop_after == "attn": a("s_branch L_fin")
    a("s_cmp_lt_u32 s29, 18"); a("s_cbranch_scc1 L_F")
    a("s_cmp_lt_u32 s29, 27"); a("s_cbranch_scc1 L_S")

    a("s_cmp_eq_u32 s49, 0"); a("s_cbranch_scc0 L_fin")
    a("s_mul_i32 s65, s28, 5"); a("s_add_u32 s65, s65, s29"); a("s_sub_u32 s65, s65, 27")
    a("s_cmp_lt_u32 s65, 36"); a("s_cbranch_scc0 L_fin")
    a("v_bfe_u32 v14, v1, 2, 3"); a("v_mul_u32_u24 v14, 2304, v14"); a("v_and_b32 v15, 3, v1"); a("v_lshl_add_u32 v14, v15, 4, v14")
    a("s_lshl_b32 s66, s65, 6"); a(f"s_add_u32 s66, s66, {W_C}")
    L = a.label("Lg"); a(f"{L}:")
    a("s_sleep 4")
    a("buffer_load_dwordx4 v[20:23], v14, s[32:35], s66 offen sc1")
    a("s_waitcnt vmcnt(0)")
    tagcheck([20], 36, L)
    unpack_b(24, 20)
    a("v_mov_b32 v25, v21"); a("v_mov_b32 v26, v22"); a("v_mov_b32 v23, v20")
    for s_ in (4, 8):
        for r in range(4): a(f"v_add_f32_dpp v{23+r}, v{23+r}, v{23+r} row_ror:{s_} {DPP}")
    for r in range(4): a(f"v_mov_b32 v{40+r}, v{23+r}")
    for r in range(4): a(f"v_permlane16_swap_b32 v{23+r}, v{40+r}")
    for r in range(4): a(f"v_add_f32 v{23+r}, v{23+r}, v{40+r}")
    rnd2(23, 24, 36); rnd2(25, 26, 36)
    a("v_lshlrev_b32 v28, 16, v16"); a("v_and_b32 v29, 0xffff0000, v16"); a("v_lshlrev_b32 v30, 16, v17"); a("v_and_b32 v31, 0xffff0000, v17")
    for r in range(4): a(f"v_add_f32 v{28+r}, v{28+r}, v{23+r}")
    rnd2(28, 29, 36); rnd2(30, 31, 36)
    stamp(7)
    a("v_lshlrev_b32 v14, 4, v1")
    a("s_mul_i32 s66, s65, 9216"); a(f"s_add_u32 s66, s66, {W_D}"); a("s_add_u32 s67, s66, 4096"); a("s_add_u32 s68, s66, 8192")
    a("s_lshl_b32 s69, s65, 5"); a("v_and_b32 v19, 3, v1"); a("v_lshlrev_b32 v19, 3, v19"); a("v_mov_b32 v18, 0")
    def rolling(nsets, nloads, emit, check, tail, pre=None):
        L = a.label("Lr")
        for k in range(nsets): emit(k)
        a(f"{L}:")
        for k in range(nsets):
            if cfg.debug: a("s_add_u32 s46, s46, 1")
            if pre: pre(k)
            a(f"s_waitcnt vmcnt({(nsets-1)*nloads})")
            check(k)
            a(f"s_cbranch_vccz {L}s{k}")
            emit(k)
        spin_tail(L)
        for k in range(nsets):
            a(f"{L}s{k}:")
            tail(k)
            if k < nsets - 1: a(f"s_branch {L}j")
        a(f"{L}j:")
    ZS = [64, 100, 136][:cfg.zsets]
    def z_emit(k):
        for i9 in range(9):
            q = ZS[k] + 4*i9
            a(f"buffer_load_dwordx4 v[{q}:{q+3}], v14, s[32:35], s{66+i9//4} offen offset:{1024*(i9%4)} sc1")
    def z_tail(k):
        b = ZS[k]
        stamp(8)
        for q in range(9): unpack_b(40+q, b+4*q)
        for q in range(1, 9): a(f"v_pk_add_f32 v[{b}:{b+1}], v[{b}:{b+1}], v[{b+4*q}:{b+4*q+1}]")
        for q in range(3): a(f"v_pk_add_f32 v[40:41], v[40:41], v[{42+2*q}:{43+2*q}]")
        a("v_add_f32 v33, v40, v41"); a("v_add_f32 v33, v33, v48")
        a(f"v_add_f32 v35, v{b+2}, v{b+6}")
        for q in range(2, 9): a(f"v_add_f32 v35, v35, v{b+2+4*q}")
        a(f"v_mov_b32 v32, v{b}"); a(f"v_mov_b32 v34, v{b+1}")
    rolling(len(ZS), 9, z_emit, lambda k: chk([ZS[k]+4*q for q in range(9)], 36), z_tail)
    for s_ in (4, 8):
        for r in range(4): a(f"v_add_f32_dpp v{32+r}, v{32+r}, v{32+r} row_ror:{s_} {DPP}")
    for sw in ("v_permlane16_swap_b32", "v_permlane32_swap_b32"):
        for r in range(4): a(f"v_mov_b32 v{40+r}, v{32+r}")
        for r in range(4): a(f"{sw} v{32+r}, v{40+r}")
        for r in range(0, 4, 2): a(f"v_pk_add_f32 v[{32+r}:{33+r}], v[{32+r}:{33+r}], v[{40+r}:{41+r}]")
    rnd2(32, 33, 36); rnd2(34, 35, 37)
    a("v_pk_add_f32 v[32:33], v[32:33], v[28:29]"); a("v_pk_add_f32 v[34:35], v[34:35], v[30:31]")
    a("v_cvt_pk_bf16_f32 v36, v32, v33"); a("v_cvt_pk_bf16_f32 v37, v34, v35")
    a("s_mov_b64 exec, 15")
    a("buffer_store_dwordx2 v[36:37], v19, s[40:43], s69 offen")
    a("s_cmp_eq_u32 s65, 0"); a("s_cbranch_scc0 L_noep")
    a("s_mov_b64 exec, 1")
    a(f"buffer_store_dword v6, v18, s[32:35], 0 offen offset:{W_EPOCH} sc1")
    a("L_noep:")
    FULL()
    stamp(9)
    a("s_branch L_fin")

    a("L_S:")
    a("v_lshrrev_b32 v32, 2, v2"); a("v_and_b32 v33, 3, v2")
    a("v_lshrrev_b32 v34, 1, v32"); a("v_and_b32 v35, 1, v3"); a("v_lshl_or_b32 v34, v35, 1, v34")
    a("v_lshlrev_b32 v34, 5, v34"); a("v_lshl_add_u32 v34, v33, 3, v34"); a("v_lshl_add_u32 v34, v32, 7, v34"); a("v_lshl_add_u32 v34, v3, 11, v34")
    a("s_lshl_b32 s51, s49, 14"); a("v_add_u32 v28, s51, v34")
    for T in range(1, 4): a(f"v_xor_b32 v{28+T}, {32*T}, v28")
    a("s_lshl_b32 s65, s28, 2"); a("s_add_u32 s65, s65, s49")
    a("s_lshl_b32 s66, s65, 13"); a(f"s_add_u32 s66, s66, {W_B}")
    a("s_lshl_b32 s68, s65, 11"); a(f"s_add_u32 s68, s68, {W_ML}")
    a("v_bfe_u32 v14, v1, 2, 2"); a("v_lshlrev_b32 v14, 11, v14"); a("v_lshl_add_u32 v14, v3, 6, v14"); a("v_and_b32 v35, 3, v1"); a("v_lshl_add_u32 v14, v35, 4, v14")
    a("v_lshlrev_b32 v41, 7, v2")
    a("v_lshlrev_b32 v18, 4, v2")
    a("s_lshl_b32 s51, s49, 8"); a("v_lshl_add_u32 v19, v3, 4, s51"); a("v_add_u32 v19, v19, v4")
    a("v_add_u32 v40, v18, v4")
    a("s_mul_i32 s69, s28, 2304"); a("s_sub_u32 s52, s29, 18"); a("s_lshl_b32 s52, s52, 8"); a("s_add_u32 s69, s69, s52"); a(f"s_add_u32 s69, s69, {W_C}")
    a(f"s_mov_b32 s54, {LOG2E:#x}")
    for r in range(16): a(f"v_mov_b32 v{192+r}, 0")
    a("v_mov_b32 v211, v6")
    wait_prog_s(210)
    for T in range(4):
        for ks in range(4):
            b = 64 + 16*T + 4*ks
            off = L_WQ + 8192*(ks >> 1) + 1024*(ks & 1)
            a(f"ds_read_b64_tr_b16 v[{b}:{b+1}], v{28+T} offset:{off}")
            a(f"ds_read_b64_tr_b16 v[{b+2}:{b+3}], v{28+T} offset:{off + 512}")
    stamp(7)
    SS = [128, 212][:cfg.ssets]
    def s_emit(k):
        b0 = SS[k]
        a(f"buffer_load_dwordx4 v[{b0}:{b0+3}], v41, s[32:35], s68 offen sc1")
        for b in range(2):
            for i4 in range(4):
                q = b0 + 4 + 16*b + 4*i4
                a(f"buffer_load_dwordx4 v[{q}:{q+3}], v14, s[32:35], s66 offen offset:{512*i4 + 256*b} sc1")
    def s_pre(k):
        b0 = SS[k]
        a(f"s_waitcnt vmcnt({(len(SS)-1)*9 + 8})")
        a(f"v_mov_b32 v32, v{b0}")
        row_red("v_max_f32", 32)
        a(f"v_sub_f32 v33, v{b0}, v32"); a("v_mul_f32 v33, s54, v33"); a("v_exp_f32 v33, v33")
        a(f"v_mul_f32 v34, v33, v{b0+1}")
        row_red("v_add_f32", 34)
        a("v_rcp_f32 v34, v34"); a("v_mul_f32 v33, v33, v34")
    def s_tail(k):
        b0 = SS[k]
        stamp(8)
        for q in range(8): unpack_b(164+q, b0+4+4*q)
        for i4 in range(4):
            for b in range(2):
                q = b0 + 4 + 16*b + 4*i4
                srcs = [q, 164+4*b+i4, q+1, q+2]
                for r in range(4):
                    op = "v_mul_f32_dpp" if i4 == 0 else "v_fmac_f32_dpp"
                    a(f"{op} v{172+4*b+r}, v33, v{srcs[r]} quad_perm:[{i4},{i4},{i4},{i4}] {DPP}")
    rolling(len(SS), 9, s_emit, lambda k: chk([SS[k]] + [SS[k]+4+4*q for q in range(8)], 32), s_tail, s_pre)
    for s_ in (4, 8):
        for r in range(8): a(f"v_add_f32_dpp v{172+r}, v{172+r}, v{172+r} row_ror:{s_} {DPP}")
    for b in range(2):
        a(f"v_cvt_pk_bf16_f32 v{180+2*b}, v{172+4*b}, v{173+4*b}"); a(f"v_cvt_pk_bf16_f32 v{181+2*b}, v{174+4*b}, v{175+4*b}")
    a("s_waitcnt lgkmcnt(0)")
    BR = [184, 188, 164, 168]
    def bc(ks):
        b, v = ks >> 1, ks & 1
        o = []
        for hh in range(2):
            o.append(f"v_mov_b32_dpp v{BR[ks]+2*hh}, v{180+2*b} row_newbcast:{2*v+hh} {DPP}")
            o.append(f"v_mov_b32_dpp v{BR[ks]+2*hh+1}, v{181+2*b} row_newbcast:{2*v+hh} {DPP}")
        return o
    for x in bc(0): a(x)
    for ks in range(4):
        nxt = bc(ks+1) if ks < 3 else []
        for T in range(4):
            A_ = 64 + 16*T + 4*ks
            a(f"v_mfma_f32_16x16x32_bf16 v[{192+4*T}:{195+4*T}], v[{A_}:{A_+3}], v[{BR[ks]}:{BR[ks]+3}], v[{192+4*T}:{195+4*T}]")
            if nxt: a(nxt[T])
    J0()
    for T in range(4): a(f"ds_write_b128 v19, v[{192+4*T}:{195+4*T}] offset:{O_RED + 64*T}")
    a("s_waitcnt lgkmcnt(0)")
    FULL()
    a("s_barrier")
    a("s_cmp_eq_u32 s49, 0"); a("s_cbranch_scc0 L_fin")
    for w in range(4): a(f"ds_read_b128 v[{64+4*w}:{67+4*w}], v40 offset:{O_RED + 256*w}")
    a("s_waitcnt lgkmcnt(0)")
    a("v_pk_add_f32 v[64:65], v[64:65], v[68:69]"); a("v_pk_add_f32 v[72:73], v[72:73], v[76:77]")
    a("v_pk_add_f32 v[66:67], v[66:67], v[70:71]"); a("v_pk_add_f32 v[74:75], v[74:75], v[78:79]")
    a("v_pk_add_f32 v[64:65], v[64:65], v[72:73]"); a("v_pk_add_f32 v[66:67], v[66:67], v[74:75]")
    a("s_mov_b64 exec, 0xffff")
    a("v_perm_b32 v208, v64, v65, s60"); a("v_perm_b32 v209, v66, v65, s61"); a("v_perm_b32 v210, v67, v65, s62")
    a("buffer_store_dwordx4 v[208:211], v18, s[32:35], s69 offen sc1")
    FULL()
    stamp(9)
    a("s_branch L_fin")

    a("L_F:")
    a("s_and_b32 s65, s29, 1")
    a("s_lshr_b32 s66, s29, 1"); a("s_mul_i32 s67, s28, 9"); a("s_add_u32 s66, s66, s67")
    a(f"v_add_u32 v19, 36864, v7")
    a("v_lshlrev_b32 v40, 1, v18")
    a("v_lshrrev_b32 v14, 3, v18")
    a("v_lshrrev_b32 v34, 3, v14"); a("v_lshlrev_b32 v34, 6, v34")
    a("v_and_b32 v35, 3, v14"); a("v_lshl_add_u32 v34, v35, 4, v34")
    a("v_bfe_u32 v35, v14, 2, 1"); a("v_lshl_add_u32 v34, v35, 3, v34"); a("v_add_u32 v41, v34, v4")
    a("v_lshl_add_u32 v42, v3, 4, v4")
    a("s_lshl_b32 s51, s49, 3"); a("v_add_u32 v43, s51, v4")
    a("v_and_b32 v44, 1, v3"); a("v_lshlrev_b32 v44, 4, v44")
    a("v_and_b32 v45, 1, v3"); a("v_lshlrev_b32 v45, 3, v45"); a("v_and_b32 v38, 3, v2"); a("v_lshl_add_u32 v45, v38, 1, v45")
    a("s_lshl_b32 s51, s49, 4"); a("v_add_u32 v45, s51, v45"); a("v_add_u32 v45, v45, v4")
    a("v_mul_u32_u24 v46, 36864, v2"); a("v_lshl_add_u32 v46, v3, 4, v46")
    a("v_lshrrev_b32 v28, 2, v2"); a("v_and_b32 v29, 3, v2")
    a("v_lshrrev_b32 v30, 1, v28"); a("v_and_b32 v31, 1, v3"); a("v_lshlrev_b32 v31, 1, v31"); a("v_xor_b32 v30, v30, v31")
    a("v_xor_b32 v30, s49, v30"); a("v_lshlrev_b32 v30, 5, v30"); a("v_lshl_add_u32 v30, v29, 3, v30")
    a("v_lshl_add_u32 v30, v28, 7, v30"); a("v_lshl_add_u32 v30, v3, 10, v30")
    a(f"v_add_u32 v47, {L_V}, v30"); a("v_xor_b32 v30, 64, v30"); a(f"v_add_u32 v48, {L_V+512}, v30")
    a("v_lshlrev_b32 v50, 16, v16"); a("v_and_b32 v51, 0xffff0000, v16"); a("v_lshlrev_b32 v52, 16, v17"); a("v_and_b32 v53, 0xffff0000, v17")
    a("s_lshl_b32 s67, s66, 10"); a("s_lshl_b32 s68, s49, 7"); a("s_add_u32 s67, s67, s68"); a(f"s_add_u32 s67, s67, {W_E}")
    a("s_lshl_b32 s68, s65, 9"); a("s_add_u32 s69, s67, s68")
    a("s_xor_b32 s68, s68, 512"); a("s_add_u32 s70, s67, s68")
    a("s_mul_i32 s51, s28, 18"); a("s_add_u32 s51, s51, s29"); a("s_lshl_b32 s51, s51, 6")
    a("s_mul_i32 s52, s49, 9216"); a("s_add_u32 s51, s51, s52"); a(f"s_add_u32 s68, s51, {W_D}")
    a(f"s_mov_b32 s66, {W_C}"); a(f"s_mov_b32 s67, {W_C + 4*2304}")
    a("v_add_u32 v49, 6912, v40") if False else None
    a("v_mov_b32 v24, 0x3f803f80"); a("v_mov_b32 v25, v24"); a("v_mov_b32 v26, v24"); a("v_mov_b32 v27, v24")
    for r in range(4): a(f"v_mov_b32 v{20+r}, 0"); a(f"v_mov_b32 v{54+r}, 0")
    a("v_mov_b32 v60, 0"); a("v_mov_b32 v61, 0")
    a("v_add_u32 v49, 4608, v40")
    for u in range(18):
        if u % 3 == 0: wait_prog_s(146 + 4*(u+3))
        base, off = (7, 4096*u) if u < 9 else (19, 4096*(u-9))
        a(f"ds_read_b64_tr_b16 v[{64+4*u}:{65+4*u}], v{base} offset:{L_WQ + off}")
        a(f"ds_read_b64_tr_b16 v[{66+4*u}:{67+4*u}], v{base} offset:{L_WQ + off + 2048}")
    a("s_waitcnt lgkmcnt(0)")
    for u in range(18): a(f"v_mfma_f32_16x16x32_bf16 v[54:57], v[{64+4*u}:{67+4*u}], v[24:27], v[54:57]")
    stamp(7)
    if cfg.cpoll:
        a("s_add_u32 s52, s26, %d" % (W_C + 12)); a("s_addc_u32 s53, s27, 0")
        a("s_mul_i32 s51, s49, 576"); a("s_add_u32 s52, s52, s51"); a("s_addc_u32 s53, s53, 0")
        L = a.label("Lp"); a(f"{L}:")
        for p in range(8): a(f"s_load_dword s{88+p}, s[52:53], {2304*p} glc")
        a("s_waitcnt lgkmcnt(0)")
        a("s_xor_b32 s88, s88, s48")
        for p in range(1, 8): a(f"s_xor_b32 s{88+p}, s{88+p}, s48"); a(f"s_or_b32 s88, s88, s{88+p}")
        a("s_cmp_eq_u32 s88, 0"); a(f"s_cbranch_scc1 {L}d")
        spin_tail(L); a(f"{L}d:")
    L = a.label("Lg"); a(f"{L}:")
    if cfg.csleep: a(f"s_sleep {cfg.csleep}")
    for p in range(8):
        vo = 40 if (p & 2) == 0 else 49
        a(f"buffer_load_dwordx4 v[{208+4*p}:{211+4*p}], v{vo}, s[32:35], s{66+p//4} offen offset:{2304*(p&1)} sc1")
    a("s_waitcnt vmcnt(0)")
    tagcheck([208+4*p for p in range(8)], 32, L)
    stamp(8)
    for p in range(8): unpack_b(136+p, 208+4*p)
    for p in range(1, 8): a(f"v_pk_add_f32 v[208:209], v[208:209], v[{208+4*p}:{209+4*p}]")
    for k in range(3): a(f"v_pk_add_f32 v[136:137], v[136:137], v[{138+2*k}:{139+2*k}]")
    a("v_add_f32 v33, v136, v137")
    a("v_add_f32 v35, v210, v214")
    for p in range(2, 8): a(f"v_add_f32 v35, v35, v{210+4*p}")
    a("v_cvt_pk_bf16_f32 v36, v208, v33"); a("v_cvt_pk_bf16_f32 v37, v209, v35")
    a("v_lshlrev_b32 v28, 16, v36"); a("v_and_b32 v29, 0xffff0000, v36"); a("v_lshlrev_b32 v30, 16, v37"); a("v_and_b32 v31, 0xffff0000, v37")
    a("v_pk_add_f32 v[28:29], v[28:29], v[50:51]"); a("v_pk_add_f32 v[30:31], v[30:31], v[52:53]")
    a("v_cvt_pk_bf16_f32 v36, v28, v29"); a("v_cvt_pk_bf16_f32 v37, v30, v31")
    a("s_mov_b32 exec_hi, 15")
    a(f"ds_write_b64 v41, v[36:37] offset:{O_LN2}")
    a("v_lshlrev_b32 v28, 16, v36"); a("v_and_b32 v29, 0xffff0000, v36"); a("v_lshlrev_b32 v30, 16, v37"); a("v_and_b32 v31, 0xffff0000, v37")
    a("v_readfirstlane_b32 s52, v28")
    a("v_pk_add_f32 v[28:29], v[28:29], s[52:53] op_sel_hi:[1,0] neg_lo:[0,1] neg_hi:[0,1]")
    a("v_pk_add_f32 v[30:31], v[30:31], s[52:53] op_sel_hi:[1,0] neg_lo:[0,1] neg_hi:[0,1]")
    a("v_pk_mul_f32 v[32:33], v[28:29], v[28:29]"); a("v_pk_fma_f32 v[32:33], v[30:31], v[30:31], v[32:33]")
    a("v_pk_add_f32 v[28:29], v[28:29], v[30:31]")
    a("v_add_f32 v60, v28, v29"); a("v_add_f32 v61, v32, v33")
    FULL()
    red2("v_add_f32", 60, 61, 32, 33)
    a("v_mul_f32 v32, 0x3be38e39, v60")
    a("v_fma_f32 v61, -v32, v60, v61")
    a("v_add_f32 v60, s52, v32")
    a("s_mov_b64 exec, 1")
    a(f"ds_write_b64 v43, v[60:61] offset:{O_STAT}")
    a(f"ds_add_u32 v4, v5 offset:{F_LN2}")
    FULL()
    wait_flag(F_LN2, 4)
    stamp(9)
    a(f"ds_read_b128 v[28:31], v4 offset:{O_STAT}"); a(f"ds_read_b128 v[32:35], v4 offset:{O_STAT+16}")
    for u in range(18): a(f"ds_read_b128 v[{136+4*u}:{139+4*u}], v42 offset:{O_LN2 + 64*u}")
    fin = ["v_add_f32 v36, v28, v30", "v_add_f32 v37, v32, v34", "v_add_f32 v36, v36, v37", "v_mul_f32 v36, 0x3e800000, v36",
           "v_sub_f32 v28, v28, v36", "v_sub_f32 v30, v30, v36", "v_sub_f32 v32, v32, v36", "v_sub_f32 v34, v34, v36",
           "v_mul_f32 v37, v28, v28", "v_fmac_f32 v37, v30, v30", "v_fmac_f32 v37, v32, v32", "v_fmac_f32 v37, v34, v34",
           "v_add_f32 v29, v29, v31", "v_add_f32 v33, v33, v35", "v_add_f32 v29, v29, v33",
           "v_fmac_f32 v29, 0x43100000, v37", "v_mul_f32 v37, 0x3ae38e39, v29", "v_max_f32 v37, 0, v37",
           "v_cvt_pk_bf16_f32 v38, v37, v36", "v_lshlrev_b32 v37, 16, v38", "v_and_b32 v36, 0xffff0000, v38",
           "v_add_f32 v37, 0x3727c5ac, v37", "v_cvt_pk_bf16_f32 v38, v37, v37", "v_lshlrev_b32 v37, 16, v38",
           "v_sqrt_f32 v37, v37", "v_nop", "v_cvt_pk_bf16_f32 v38, v37, v37", "v_lshlrev_b32 v37, 16, v38", "v_rcp_f32 v37, v37"]
    for u in range(18):
        if u % 2 == 0 or u == 17: a(f"s_waitcnt lgkmcnt({min(15, max(0, 16 - u))})")
        a(f"v_mfma_f32_16x16x32_bf16 v[20:23], v[{64+4*u}:{67+4*u}], v[{136+4*u}:{139+4*u}], v[20:23]")
        for _ in range(2):
            if fin and u >= 1: a(fin.pop(0))
    for x in fin: a(x)
    a("v_pk_fma_f32 v[20:21], v[54:55], v[36:37], v[20:21] op_sel_hi:[1,0,1] neg_lo:[1,0,0] neg_hi:[1,0,0]")
    a("v_pk_fma_f32 v[22:23], v[56:57], v[36:37], v[22:23] op_sel_hi:[1,0,1] neg_lo:[1,0,0] neg_hi:[1,0,0]")
    a("v_pk_mul_f32 v[20:21], v[20:21], v[36:37] op_sel:[0,1] op_sel_hi:[1,1]")
    a("v_pk_mul_f32 v[22:23], v[22:23], v[36:37] op_sel:[0,1] op_sel_hi:[1,1]")
    rnd2(20, 21, 24); rnd2(22, 23, 25)
    a("s_cmp_eq_u32 s65, 0")
    a("s_cselect_b32 exec_lo, 0, 0x00010001"); a("s_cselect_b32 exec_hi, 0x00010001, 0")
    pack_gran(24, 20)
    lstore("buffer_store_dwordx4 v[24:27], v44, s[32:35], s70 offen", "E")
    FULL()
    stamp(10)
    a("s_mov_b32 s52, 0x22222222"); a("s_mov_b32 s53, 0x22222222")
    a("s_mov_b32 s54, 0x44444444"); a("s_mov_b32 s55, 0x44444444")
    a("s_mov_b32 s56, 0x88888888"); a("s_mov_b32 s57, 0x88888888")
    a("s_cmp_eq_u32 s65, 0"); a("s_cselect_b64 s[58:59], 0, -1")
    a("v_cndmask_b32 v34, v20, v21, s[52:53]"); a("v_cndmask_b32 v34, v34, v22, s[54:55]"); a("v_cndmask_b32 v34, v34, v23, s[56:57]")
    for r in range(4): a(f"v_mov_b32 v{20+r}, 0")
    for ck in range(9):
        if ck % 3 == 0: wait_prog_s(218 + 4*(ck+3))
        a(f"ds_read_b64_tr_b16 v[{64+4*ck}:{65+4*ck}], v47 offset:{4096*ck}")
        a(f"ds_read_b64_tr_b16 v[{66+4*ck}:{67+4*ck}], v48 offset:{4096*ck}")
    ES = [100, 104, 108][:cfg.esets]
    rolling(len(ES), 1, lambda k: a(f"buffer_load_dwordx4 v[{ES[k]}:{ES[k]+3}], v44, s[32:35], s69 offen sc1"),
            lambda k: chk([ES[k]], 35),
            lambda k: (a(f"v_mov_b32 v24, v{ES[k]}"), a(f"v_mov_b32 v25, v{ES[k]+1}"), a(f"v_mov_b32 v26, v{ES[k]+2}")))
    stamp(11)
    unpack_b(28, 24)
    a("v_cndmask_b32 v35, v24, v28, s[52:53]"); a("v_cndmask_b32 v35, v35, v25, s[54:55]"); a("v_cndmask_b32 v35, v35, v26, s[56:57]")
    a("v_and_b32 v35, 0xffff0000, v35")
    a("v_cndmask_b32 v36, v34, v35, s[58:59]")
    a("v_cndmask_b32 v37, v35, v34, s[58:59]")
    a("v_mul_f32 v38, v36, v36"); a("v_mov_b32 v39, 1.0"); a("v_fmac_f32 v39, 0x3d372713, v38")
    a("v_mul_f32 v39, v39, v36")
    a("v_mul_f32 v39, 0xc0135761, v39")
    a("v_exp_f32 v39, v39"); a("v_add_f32 v39, 1.0, v39"); a("v_rcp_f32 v39, v39"); a("v_mul_f32 v39, v39, v36")
    rnd1(39, 38)
    a("v_mul_f32 v39, v39, v37"); a("v_cvt_pk_bf16_f32 v39, v39, v39")
    a("s_cmp_eq_u32 s65, 0")
    a("s_cselect_b32 exec_lo, 0x000f000f, 0"); a("s_cselect_b32 exec_hi, 0, 0x000f000f")
    a(f"ds_write_b16 v45, v39 offset:{O_HH}")
    a("s_mov_b32 s52, 0x00010001"); a("s_mov_b32 s53, 0x00010001")
    a("s_waitcnt lgkmcnt(0)")
    FULL()
    a("s_barrier")
    a(f"ds_read_b128 v[24:27], v42 offset:{O_HH}")
    a("v_mov_b32 v43, v6")
    a("s_waitcnt lgkmcnt(0)")
    for ck in range(9):
        B = 28 + 4*(ck & 1)
        for r in range(4): a(f"v_cndmask_b32 v{B+r}, 0, v{24+r}, s[52:53]")
        if ck < 8: a("s_lshl_b64 s[52:53], s[52:53], 1")
        a(f"v_mfma_f32_16x16x32_bf16 v[20:23], v[{64+4*ck}:{67+4*ck}], v[{B}:{B+3}], v[20:23]")
    a("s_mov_b32 exec_lo, 0x01ff01ff"); a("s_mov_b32 exec_hi, 0x01ff01ff")
    a("v_perm_b32 v40, v20, v21, s60"); a("v_perm_b32 v41, v22, v21, s61"); a("v_perm_b32 v42, v23, v21, s62")
    a("buffer_store_dwordx4 v[40:43], v46, s[32:35], s68 offen sc1")
    FULL()

    a("L_fin:")
    if cfg.debug:
        a("s_memrealtime s[96:97]")
        a("s_getreg_b32 s71, hwreg(HW_REG_XCC_ID)")
        a("s_waitcnt lgkmcnt(0) vmcnt(0)")
        a("s_mov_b64 exec, -1")
        a("s_mov_b32 s98, s46")
        srd(44, 26, W_SIZE + 0x100000)
        for k in range(12): a(f"v_mov_b32 v{20+k}, s{72+2*k}")
        a("v_mov_b32 v32, s96"); a("v_mov_b32 v33, s71"); a("v_mov_b32 v34, s50"); a("v_mov_b32 v35, s98")
        a("s_mul_i32 s51, s2, 5"); a("s_add_u32 s51, s51, s3"); a("s_lshl_b32 s51, s51, 6"); a(f"s_add_u32 s51, s51, {W_STAMP}")
        a("v_mov_b32 v14, 0")
        a("s_mov_b64 exec, 1")
        for k in range(4): a(f"buffer_store_dwordx4 v[{20+4*k}:{23+4*k}], v14, s[44:47], s51 offen offset:{16*k}")
    a("s_waitcnt vmcnt(0)")
    a("L_end:")
    a("s_endpgm")
    body = a.text()
    nbytes_est = 0
    head = f"""; sequential pre-LN decode layer: LN -> q -> sliding-window GQA attention -> wo -> LN -> GeGLU FFN
; @launch grid=(256,1,1) block=(320,1,1) lds={LDS_BYTES}
.amdgcn_target "amdgcn-amd-amdhsa--gfx950"
.set CODE_KB, {cfg.code_kb if hasattr(cfg, 'code_kb') else 14}
.text
.globl {NAME}
.p2align 8
.type {NAME},@function
{NAME}:
"""
    tail = '.section .rodata,"a"\n.p2align 6\n' + KD.format(name=NAME, vgpr=256, sgpr=100, accum=256)
    return head + body + tail

if __name__ == "__main__":
    dbg = "debug" in sys.argv
    s = gen(Cfg(debug=dbg))
    out = sys.argv[1] if len(sys.argv) > 1 else "sequential_preLN__sliding_block_cached__glu_gated_geglu__decode.s"
    open(out, "w").write(s)
    print("wrote", out, len(s), "bytes")
```

```python
import sys
from asmb import Asm, KD

NAME = "sequential_preLN__sliding_block_cached__glu_gated_geglu__decode_kernel"

L_WQ, L_K, L_V, L_SCR = 0, 18432, 83968, 149504
LDS_BYTES = 163840
O_PROG = 0
O_FL = 256
F_KFREE, F_VFREE, F_QRDY, F_LOC, F_MAXR, F_PRDY, F_RED, F_ST, F_LN2, F_HH = [O_FL + 4*k for k in range(10)]
O_LN1 = 512
O_Q = 1664
O_MX = 2176
O_LS = 2208
O_P = 2304
O_LN2 = 3328
O_RED = 4480
O_STAT = 5504
O_HH = 5568
W_EPOCH = 0
W_A = 0x1000
W_B = 0x20000
W_ML = 0x60000
W_C = 0x70000
W_E = 0x78000
W_D = 0x90000
W_X = 0xF0000
W_SIZE = 0x100000
W_STAMP = 0x100000
TAG_INC = 0x9E3779B9
SCALE = 0x3DB504F3
LOG2E = 0x3FB8AA3B

class Cfg:
    W = 24
    WF = 32
    WS = 40
    WS0 = 36
    nt = True
    debug = False
    budget = 60000
    prefetch_code = True
    cpoll = False
    zsets = 1
    ssets = 1
    esets = 2
    pvgroups = [[0,1,2,3],[4,5],[6],[7]]
    WF1 = 16
    NF1 = 32
    nopub = False
    cgrp = 6
    Wlate = 0
    WS0late = 40
    cdelay = 0
    zpf = 0
    WD = 0
    pretouch = True
    transposed = False
    use_local = True
    ackstamp = False
    force_local = ''
    nopub2 = False
    nopv = False
    nogather = False
    lsleep = 0
    qsleep = 0
    noqcheck = False
    stop_after = None
    loader_only = False
    rot = 5
    csleep = 0
    def __init__(self, **k):
        for a, b in k.items(): setattr(self, a, b)

def gen(cfg):
    a = Asm()
    ntf = " nt" if cfg.nt else ""
    nstamp = [0]
    def stamp(k):
        if cfg.debug:
            a(f"s_memrealtime s[{72+2*k}:{73+2*k}]")
    def srd(d, p, size):
        a(f"s_mov_b32 s{d}, s{p}"); a(f"s_mov_b32 s{d+1}, s{p+1}")
        a(f"s_mov_b32 s{d+2}, {size}"); a(f"s_mov_b32 s{d+3}, 0x20000")
    def spin_tail(L):
        a("s_sub_u32 s50, s50, 1")
        a(f"s_cbranch_scc0 {L}")
        a("s_mov_b32 s50, 0")
    def wait_flag(off, n, vt=15, signed=False):
        L = a.label("Lw")
        a(f"{L}:")
        if cfg.lsleep: a(f"s_sleep {cfg.lsleep}")
        a(f"ds_read_b32 v{vt}, v4 offset:{off}")
        a("s_waitcnt lgkmcnt(0)")
        a(f"v_readfirstlane_b32 s51, v{vt}")
        a(f"s_cmp_ge_i32 s51, {n}")
        a(f"s_cbranch_scc1 {L}d")
        spin_tail(L)
        a(f"{L}d:")
    def arrive(off):
        a("s_mov_b64 exec, 1")
        a(f"ds_add_u32 v4, v5 offset:{off}")
        a("s_mov_b64 exec, -1")
    def row_red(op, v, steps=(8, 4, 2, 1)):
        for s in steps:
            a(f"{op}_dpp v{v}, v{v}, v{v} row_ror:{s} row_mask:0xf bank_mask:0xf")
    def xrow_red(op, v, t):
        a(f"v_mov_b32 v{t}, v{v}"); a(f"v_permlane16_swap_b32 v{v}, v{t}"); a(f"{op} v{v}, v{v}, v{t}")
        a(f"v_mov_b32 v{t}, v{v}"); a(f"v_permlane32_swap_b32 v{v}, v{t}"); a(f"{op} v{v}, v{v}, v{t}")
    def all_red(op, v, t):
        row_red(op, v); xrow_red(op, v, t)
    def rnd1(v, t):
        a(f"v_cvt_pk_bf16_f32 v{t}, v{v}, v{v}"); a(f"v_lshlrev_b32 v{v}, 16, v{t}")
    def rnd2(x, y, t):
        a(f"v_cvt_pk_bf16_f32 v{t}, v{x}, v{y}"); a(f"v_lshlrev_b32 v{x}, 16, v{t}"); a(f"v_and_b32 v{y}, 0xffff0000, v{t}")
    def pack_gran(d, q):
        a(f"v_perm_b32 v{d}, v{q}, v{q+1}, s60")
        a(f"v_perm_b32 v{d+1}, v{q+2}, v{q+1}, s61")
        a(f"v_perm_b32 v{d+2}, v{q+3}, v{q+1}, s62")
        a(f"v_mov_b32 v{d+3}, v6")
    def unpack_b(dst, gq):
        a(f"v_perm_b32 v{dst}, v{gq+2}, v{gq+1}, s63")
        a(f"v_perm_b32 v{dst}, v{dst}, v{gq}, s64")
    def tagcheck(grs, acc, L):
        a(f"v_xor_b32 v{acc}, v{grs[0]+3}, v6")
        for gq in grs[1:]:
            a(f"v_bitop3_b32 v{acc}, v{gq+3}, v6, v{acc} bitop3:0xbe")
        a(f"v_cmp_ne_u32 vcc, 0, v{acc}")
        a(f"s_cbranch_vccz {L}d")
        spin_tail(L)
        a(f"{L}d:")

    if cfg.debug:
        for k in range(72, 99): a(f"s_mov_b32 s{k}, 0")
    stamp(0)
    a("s_cmp_ge_u32 s2, 256"); a("s_cbranch_scc1 L_end")
    a("s_load_dwordx16 s[4:19], s[0:1], 0")
    a("s_load_dwordx8 s[20:27], s[0:1], 64")
    a("v_lshrrev_b32 v2, 6, v0")
    a("v_and_b32 v1, 63, v0")
    if cfg.transposed: a("s_lshr_b32 s28, s2, 5")
    else: a("s_and_b32 s28, s2, 7")
    a("v_readfirstlane_b32 s3, v2")
    if cfg.transposed: a("s_and_b32 s29, s2, 31")
    else: a("s_lshr_b32 s29, s2, 3")
    a("s_lshr_b32 s30, s29, 4"); a("s_lshl_b32 s31, s28, 1"); a("s_add_u32 s30, s30, s31")
    a("s_and_b32 s31, s29, 15")
    a(f"s_mov_b32 s50, {cfg.budget}")
    a(f"v_mov_b32 v4, {L_SCR}")
    a("s_cmp_eq_u32 s3, 0"); a("s_cbranch_scc0 L_compute")

    a("s_setprio 3")
    a("v_lshrrev_b32 v2, 3, v1"); a("v_and_b32 v3, 7, v1")
    a("v_bfe_u32 v8, v2, 1, 2"); a("v_lshlrev_b32 v8, 1, v8"); a("v_xor_b32 v3, v3, v8"); a("v_lshlrev_b32 v3, 4, v3")
    a("v_lshl_add_u32 v10, v2, 13, v3")
    a("s_lshr_b32 s64, s31, 2"); a(f"s_mul_i32 s64, s64, {144*8192}")
    a("s_and_b32 s65, s31, 3"); a("s_lshl_b32 s65, s65, 7"); a("s_add_u32 s64, s64, s65")
    a("s_lshl_b32 s65, s30, 9"); a("s_add_u32 s64, s64, s65")
    a(f"s_mov_b32 m0, {L_WQ}")
    a("s_mov_b32 s46, 4718592"); a("s_mov_b32 s47, 0x20000")
    a("s_waitcnt lgkmcnt(0)")
    a("s_mov_b32 s44, s10"); a("s_mov_b32 s45, s11")
    stamp(1)
    st = dict(W=cfg.W)
    def pub():
        a("v_add_u32 v20, 1, v20"); a("ds_write_b32 v21, v20")
    def issue(voff, soff, imm=0, wait=True):
        a(f"buffer_load_dwordx4 v{voff}, s[44:47], {soff} offen offset:{imm}{ntf} lds")
        if wait:
            a(f"s_waitcnt vmcnt({st['W']-1})"); pub()
    def loop_begin(n):
        L = a.label("Ll"); a(f"s_mov_b32 s67, {n}"); a(f"{L}:"); return L
    def loop_end(L):
        a("s_sub_u32 s67, s67, 1"); a("s_cbranch_scc0 " + L)
    loop_begin0 = loop_begin
    def loop_begin(n): return loop_begin0(n - 1)
    assert cfg.W - 1 >= 18
    L = loop_begin(6)
    for q in range(3):
        issue(10, "s64", wait=False)
        a("s_add_u32 m0, m0, 1024"); a(f"s_add_u32 s64, s64, {8*8192}")
    loop_end(L)
    stamp(6)
    a("v_mov_b32 v6, 0"); a("v_mov_b32 v7, 0")
    a("v_lshl_add_u32 v5, v1, 3, v4")
    a("ds_write_b64 v5, v[6:7]")
    a("v_mul_u32_u24 v8, 1152, v2"); a("v_add_u32 v11, v8, v3")
    a("v_xor_b32 v19, 64, v11")
    a("v_mul_u32_u24 v8, 9216, v2"); a("v_add_u32 v18, v8, v3")
    a("v_lshrrev_b32 v2, 4, v1"); a("v_and_b32 v3, 15, v1")
    a("v_xor_b32 v8, v3, v2"); a("v_lshlrev_b32 v8, 4, v8"); a("v_lshl_add_u32 v12, v2, 8, v8")
    a("v_xor_b32 v13, 64, v12"); a("v_xor_b32 v14, 0x80, v12"); a("v_xor_b32 v15, 0xc0, v12")
    a("v_lshlrev_b32 v8, 1, v2"); a("v_xor_b32 v8, v3, v8"); a("v_lshlrev_b32 v8, 4, v8"); a("v_lshl_add_u32 v16, v2, 8, v8")
    a("v_xor_b32 v17, 0x80, v16")
    a("v_lshl_add_u32 v21, v1, 2, v4")
    a(f"v_mov_b32 v20, {18-(cfg.W-1)}")
    a("s_lshl_b32 s65, s30, 24"); a(f"s_add_u32 s65, s65, {61440*256}")
    a("s_lshl_b32 s66, s31, 16"); a("s_add_u32 s65, s65, s66")
    if cfg.rot:
        a(f"s_mul_i32 s69, s2, {cfg.rot}"); a("s_lshr_b32 s70, s69, 4"); a("s_add_u32 s69, s69, s70"); a("s_and_b32 s69, s69, 15"); a("s_lshl_b32 s69, s69, 12")
    else:
        a("s_mov_b32 s69, 0")
    a("s_waitcnt lgkmcnt(0)")
    a("s_barrier")
    stamp(7)
    def kv(ptr, lds, vo, nv):
        srd(44, ptr, 0x10000000)
        a(f"s_mov_b32 m0, {lds}"); a("s_mov_b32 s68, s69")
        L = loop_begin(16)
        a("s_add_u32 s66, s65, s68")
        for q in range(4): issue(vo + (q % nv), "s66", q*1024)
        a("s_add_u32 m0, m0, 4096"); a("s_add_u32 s68, s68, 4096"); a("s_and_b32 s68, s68, 0xffff")
        loop_end(L)
    def kvphases():
        kv(6, L_K, 12, 4)
        stamp(2)
        kv(8, L_V, 16, 2)
        stamp(3)
    def loader_body(Wa, WS0a, sfx):
        a("s_cmp_lt_u32 s29, 18"); a("s_cbranch_scc1 L_ldA" + sfx)
        a("s_cmp_lt_u32 s29, 27"); a("s_cbranch_scc1 L_ldS0" + sfx)
        a("L_ldA" + sfx + ":"); st["W"] = Wa; a(f"v_mov_b32 v20, {18-(Wa-1)}")
        kvphases()
        def lwait_flag(off, n):
            L = a.label("Lw")
            a(f"{L}:")
            a(f"ds_read_b32 v22, v4 offset:{off}")
            a("s_waitcnt lgkmcnt(0)")
            a("v_readfirstlane_b32 s51, v22")
            a(f"s_cmp_ge_i32 s51, {n}")
            a(f"s_cbranch_scc1 {L}d")
            spin_tail(L)
            a(f"{L}d:")
        def widen_issue(newW, emit_one):
            for k in range(newW - st['W']): emit_one(False)
            st['W'] = newW
        def drain():
            for k in range(st['W']-2, -1, -1):
                a(f"s_waitcnt vmcnt({k})"); pub()
        a("s_cmp_lt_u32 s29, 18"); a("s_cbranch_scc1 L_ldF" + sfx)
        st['W'] = Wa
        if cfg.zpf:
            lwait_flag(F_KFREE, 4)
            a("s_sub_u32 s64, s29, 27")
            a("s_bitcmp1_b32 s64, 0")
            a("s_cselect_b32 s44, s18, s16"); a("s_cselect_b32 s45, s19, s17"); a("s_mov_b32 s46, 5308416"); a("s_mov_b32 s47, 0x20000")
            a("s_cselect_b32 s52, s16, s18"); a("s_cselect_b32 s53, s17, s19"); a("s_mov_b32 s54, 5308416"); a("s_mov_b32 s55, 0x20000")
            for k in range(4):
                a(f"s_add_u32 s56, s64, {5*k}"); a("s_lshr_b32 s57, s56, 1"); a("s_mul_i32 s58, s28, 9"); a("s_add_u32 s57, s57, s58")
                a("s_lshl_b32 s57, s57, 7"); a(f"s_add_u32 s57, s57, {(72 - cfg.zpf)*8*9216}")
                a("s_cmp_lt_u32 s56, 18"); a(f"s_cselect_b32 s{60+k}, s57, 0x40000000")
            a(f"s_mov_b32 m0, {L_K}")
            L = loop_begin(cfg.zpf)
            for k in range(4):
                sr = "s[44:47]" if k % 2 == 0 else "s[52:55]"
                a(f"buffer_load_dwordx4 v18, {sr}, s{60+k} offen lds")
                a(f"s_waitcnt vmcnt({st['W']-1})"); pub()
                a(f"s_add_u32 s{60+k}, s{60+k}, {8*9216}")
            loop_end(L)
        drain()
        a("s_branch L_ldEnd")
        a("L_ldS0" + sfx + ":")
        st['W'] = WS0a
        a(f"v_mov_b32 v20, {18-(WS0a-1)}")
        kvphases()
        lwait_flag(F_KFREE, 4)
        srd(44, 12, 4718592)
        a("s_sub_u32 s66, s29, 18"); a("s_lshl_b32 s66, s66, 7"); a(f"s_mul_i32 s68, s28, {512*1152}"); a("s_add_u32 s66, s66, s68")
        a(f"s_mov_b32 m0, {L_WQ}")
        a("v_lshrrev_b32 v2, 3, v1"); a("v_and_b32 v3, 7, v1"); a("v_bfe_u32 v8, v2, 1, 1"); a("v_lshlrev_b32 v8, 1, v8"); a("v_xor_b32 v3, v3, v8")
        a("v_lshlrev_b32 v3, 4, v3"); a("v_mul_u32_u24 v8, 1152, v2"); a("v_add_u32 v24, v8, v3"); a("v_xor_b32 v23, 64, v24")
        cnt = [0]
        def one_wo(wait):
            issue(23 if (cnt[0] >> 1) & 1 else 24, "s66", wait=wait); a("s_add_u32 m0, m0, 1024"); a(f"s_add_u32 s66, s66, {8*1152}")
            cnt[0] += 1
        ex = (cfg.WS - st['W'] + 3) // 4 * 4 if cfg.WS > st['W'] else 0
        widen_issue(st['W'] + ex, one_wo)
        L = loop_begin((64 - ex) // 4)
        for q in range(4): one_wo(True)
        loop_end(L)
        drain()
        a("s_branch L_ldEnd")
        a("L_ldF" + sfx + ":")
        st['W'] = Wa
        lwait_flag(F_KFREE, 4)
        srd(44, 16, 5308416)
        a("s_bitcmp1_b32 s29, 0"); a("s_cselect_b32 s44, s18, s16"); a("s_cselect_b32 s45, s19, s17")
        a("s_lshr_b32 s68, s29, 1"); a("s_mul_i32 s69, s28, 9"); a("s_add_u32 s68, s68, s69")
        a("s_lshl_b32 s66, s68, 7")
        a(f"s_mov_b32 m0, {L_WQ}")
        def one_m(wait):
            issue(18, "s66", wait=wait); a("s_add_u32 m0, m0, 1024"); a(f"s_add_u32 s66, s66, {8*9216}")
        if cfg.WF1 and cfg.WF1 < Wa:
            for k in range(Wa - cfg.WF1):
                a(f"s_waitcnt vmcnt({Wa - 2 - k})"); pub()
            st['W'] = cfg.WF1
            L = loop_begin(cfg.NF1); one_m(True); loop_end(L)
            done = cfg.NF1
        else:
            done = 0
        ex = cfg.WF - st['W']
        widen_issue(cfg.WF, one_m)
        L = loop_begin(72 - done - ex); one_m(True); loop_end(L)
        stamp(4)
        if cfg.WD and cfg.WD < st['W']:
            for k in range(st['W'] - cfg.WD):
                a(f"s_waitcnt vmcnt({st['W'] - 2 - k})"); pub()
            st['W'] = cfg.WD
        lwait_flag(F_VFREE, 4)
        srd(44, 20, 5308416)
        a("s_and_b32 s69, s29, 1"); a("s_lshl_b32 s69, s69, 3"); a("s_lshl_b32 s68, s68, 6"); a("s_add_u32 s68, s68, s69")
        a("s_mul_i32 s66, s68, 1152")
        a(f"s_mov_b32 m0, {L_V}")
        L = loop_begin(9)
        for o in range(4):
            a(f"s_add_u32 s68, s66, {o*16*1152}")
            issue(19 if (o & 1) else 11, "s68")
            a("s_add_u32 m0, m0, 1024")
        a("s_add_u32 s66, s66, 128")
        loop_end(L)
        drain()
        a("s_branch L_ldEnd")
    if cfg.Wlate:
        a("s_getreg_b32 s64, hwreg(HW_REG_XCC_ID, 0, 4)"); a("s_cmp_ge_u32 s64, 4"); a("s_cbranch_scc1 L_ldLate")
        loader_body(cfg.W, cfg.WS0, "e")
        a("L_ldLate:")
        loader_body(cfg.Wlate, cfg.WS0late, "l")
    else:
        loader_body(cfg.W, cfg.WS0, "")
    a("L_ldEnd:")
    stamp(5)
    a("s_branch L_fin")

    DPP = "row_mask:0xf bank_mask:0xf"
    J0 = lambda: (a("s_mov_b32 exec_lo, 0x00010001"), a("s_mov_b32 exec_hi, 0x00010001"))
    J01 = lambda: (a("s_mov_b32 exec_lo, 0x00030003"), a("s_mov_b32 exec_hi, 0x00030003"))
    FULL = lambda: a("s_mov_b64 exec, -1")
    def wait_prog_s(thr):
        L = a.label("Lw")
        a(f"s_cmp_ge_i32 s47, {thr}"); a(f"s_cbranch_scc1 {L}d")
        a(f"{L}:")
        if cfg.lsleep: a(f"s_sleep {cfg.lsleep}")
        a(f"ds_read_b32 v15, v4 offset:{O_PROG}"); a("s_waitcnt lgkmcnt(0)"); a("v_readfirstlane_b32 s47, v15")
        a(f"s_cmp_ge_i32 s47, {thr}"); a(f"s_cbranch_scc1 {L}d"); spin_tail(L); a(f"{L}d:")
    def red2(op, x, y, tx, ty):
        for s_ in (8, 4, 2, 1):
            a(f"{op}_dpp v{x}, v{x}, v{x} row_ror:{s_} {DPP}"); a(f"{op}_dpp v{y}, v{y}, v{y} row_ror:{s_} {DPP}")
        for sw in ("v_permlane16_swap_b32", "v_permlane32_swap_b32"):
            a(f"v_mov_b32 v{tx}, v{x}"); a(f"v_mov_b32 v{ty}, v{y}")
            a(f"{sw} v{x}, v{tx}"); a(f"{sw} v{y}, v{ty}")
            a(f"{op} v{x}, v{x}, v{tx}"); a(f"{op} v{y}, v{y}, v{ty}")
    def ln_final(mean, var, t):
        a(f"v_max_f32 v{var}, 0, v{var}")
        a(f"v_cvt_pk_bf16_f32 v{t}, v{var}, v{mean}")
        a(f"v_lshlrev_b32 v{var}, 16, v{t}"); a(f"v_and_b32 v{mean}, 0xffff0000, v{t}")
        a(f"v_add_f32 v{var}, 0x3727c5ac, v{var}"); rnd1(var, t)
        a(f"v_sqrt_f32 v{var}, v{var}"); rnd1(var, t); a(f"v_rcp_f32 v{var}, v{var}")

    def chk(grs, acc):
        a(f"v_xor_b32 v{acc}, v{grs[0]+3}, v6")
        for gq in grs[1:]: a(f"v_bitop3_b32 v{acc}, v{gq+3}, v6, v{acc} bitop3:0xbe")
        a(f"v_cmp_ne_u32 vcc, 0, v{acc}")
    def lstore(txt, key):
        if key in cfg.force_local:
            a(txt); return
        if not cfg.use_local:
            a(txt + " sc1"); return
        L = a.label("Ls")
        a("s_cmp_eq_u32 s45, 1"); a(f"s_cbranch_scc1 {L}p")
        a(txt + " sc1"); a(f"s_branch {L}q")
        a(f"{L}p:"); a(txt); a(f"{L}q:")
    a("L_compute:")
    a("s_sub_u32 s49, s3, 1")
    a("s_mov_b32 s47, -1000")
    if cfg.debug: a("s_mov_b32 s46, 0")
    a("v_and_b32 v2, 15, v1"); a("v_lshrrev_b32 v3, 4, v1")
    a("v_mov_b32 v5, 1")
    a("s_mov_b32 s60, 0x07060501"); a("s_mov_b32 s61, 0x07060502"); a("s_mov_b32 s62, 0x07060503")
    a("s_mov_b32 s63, 0x04000c0c"); a("s_mov_b32 s64, 0x0706000c")
    a("v_lshlrev_b32 v14, 5, v1")
    a("v_min_u32 v15, 35, v1"); a("s_mul_i32 s51, s49, 36"); a("v_add_u32 v15, s51, v15"); a("v_lshlrev_b32 v18, 3, v15")
    a("s_mul_i32 s52, s28, 5"); a("s_add_u32 s52, s52, s29"); a("s_sub_u32 s52, s52, 27")
    a("s_lshl_b32 s53, s52, 5"); a("v_and_b32 v19, 3, v1"); a("v_lshl_add_u32 v19, v19, 3, s53")
    a("s_cmp_ge_u32 s29, 27"); a("s_cselect_b64 s[56:57], -1, 0")
    a("v_cndmask_b32 v18, v18, v19, s[56:57]")
    a("s_waitcnt lgkmcnt(0)")
    srd(36, 4, 1152)
    a("buffer_load_dwordx4 v[20:23], v14, s[36:39], 0 offen")
    a("buffer_load_dwordx4 v[24:27], v14, s[36:39], 0 offen offset:16")
    a("buffer_load_dwordx2 v[16:17], v18, s[36:39], 0 offen")
    a("s_load_dword s48, s[26:27], 0")
    a("s_mov_b32 s71, 0")
    if cfg.prefetch_code:
        a("s_cmp_eq_u32 s29, 31"); a("s_cbranch_scc0 L_nopf")
        a("s_cmp_eq_u32 s49, 3"); a("s_cbranch_scc0 L_nopf")
        a("s_mov_b32 s71, 1")
        a("s_getpc_b64 s[52:53]")
        a("s_and_b32 s52, s52, 0xffffff00")
        a("v_lshlrev_b32 v15, 4, v1")
        a("s_mov_b32 s51, CODE_KB")
        a("L_pfl:")
        a("global_load_dwordx4 v[252:255], v15, s[52:53]")
        a("v_add_u32 v15, 1024, v15")
        a("s_sub_u32 s51, s51, 1"); a("s_cmp_lg_u32 s51, 0"); a("s_cbranch_scc1 L_pfl")
        a("L_nopf:")
    a("s_barrier")
    if cfg.loader_only:
        arrive(F_KFREE); arrive(F_VFREE); a("s_branch L_fin")
    srd(32, 26, W_SIZE + (0x100000 if cfg.debug else 0)); srd(40, 22, 1152)
    a("v_lshrrev_b32 v28, 2, v2"); a("v_and_b32 v29, 3, v2")
    a("v_and_b32 v30, 1, v3"); a("v_lshrrev_b32 v31, 1, v3")
    a("v_lshl_add_u32 v32, v30, 2, v28")
    a("v_lshrrev_b32 v33, 1, v32")
    a("v_xor_b32 v33, s49, v33"); a("v_lshlrev_b32 v33, 5, v33")
    a("v_lshl_add_u32 v33, v29, 3, v33")
    a("v_lshl_add_u32 v33, v32, 7, v33")
    a("v_lshl_add_u32 v7, v31, 10, v33")
    a("v_lshl_add_u32 v33, v3, 2, v28")
    a("s_lshl_b32 s51, s49, 1"); a("v_xor_b32 v34, s51, v32"); a("v_lshlrev_b32 v34, 5, v34")
    a("v_lshl_add_u32 v34, v29, 3, v34"); a("v_lshl_add_u32 v34, v33, 8, v34")
    a(f"v_add_u32 v8, {L_V}, v34"); a("v_xor_b32 v34, 32, v34"); a(f"v_add_u32 v9, {L_V}, v34")
    a("v_xor_b32 v33, v3, v2"); a("v_lshlrev_b32 v33, 4, v33"); a("v_lshl_add_u32 v33, v2, 8, v33")
    a("s_lshl_b32 s51, s49, 14"); a(f"s_add_u32 s51, s51, {L_K}")
    for c in range(4):
        if c: a(f"v_xor_b32 v34, {64*c}, v33"); a(f"v_add_u32 v{10+c}, s51, v34")
        else: a("v_add_u32 v10, s51, v33")
    a(f"v_add_u32 v50, {O_LN1}, v14"); a("v_add_u32 v50, v50, v4")
    a("s_lshr_b32 s51, s31, 2"); a("s_mul_i32 s51, s51, 288"); a(f"s_add_u32 s51, s51, {L_SCR+O_LN1}")
    a("v_lshl_add_u32 v51, v3, 3, s51")
    a("v_and_b32 v33, 1, v2")
    a("v_lshlrev_b32 v34, 8, v33"); a("v_lshl_add_u32 v34, v3, 4, v34"); a("v_add_u32 v52, v34, v4")
    a("v_lshl_add_u32 v53, v33, 4, v4"); a("s_lshl_b32 s51, s49, 2"); a("v_add_u32 v54, s51, v53")
    a("v_lshl_add_u32 v55, v3, 5, v53"); a("s_lshl_b32 s51, s49, 8"); a("v_add_u32 v56, s51, v55")
    a("s_lshl_b32 s65, s30, 2"); a("s_lshr_b32 s52, s31, 2"); a("s_add_u32 s65, s65, s52"); a("s_lshl_b32 s65, s65, 10")
    a("s_and_b32 s52, s31, 3"); a("s_lshl_b32 s52, s52, 8"); a("s_add_u32 s65, s65, s52")
    a("s_lshl_b32 s52, s49, 6"); a("s_add_u32 s65, s65, s52"); a(f"s_add_u32 s65, s65, {W_A}")
    a("v_lshlrev_b32 v57, 4, v3")
    a("s_lshl_b32 s66, s30, 14"); a("s_lshl_b32 s52, s31, 9"); a("s_add_u32 s66, s66, s52")
    a("s_lshl_b32 s52, s49, 7"); a("s_add_u32 s66, s66, s52"); a(f"s_add_u32 s66, s66, {W_B}")
    a("v_and_b32 v58, 1, v2"); a("v_lshlrev_b32 v58, 13, v58"); a("v_bfe_u32 v33, v2, 1, 1"); a("v_lshl_add_u32 v58, v33, 6, v58"); a("v_lshl_add_u32 v58, v3, 4, v58")
    a("s_lshl_b32 s67, s30, 12"); a("s_lshl_b32 s52, s31, 7"); a("s_add_u32 s67, s67, s52"); a(f"s_add_u32 s67, s67, {W_ML}")
    a("v_and_b32 v59, 1, v2"); a("v_lshlrev_b32 v59, 11, v59"); a("v_lshrrev_b32 v33, 1, v2"); a("v_lshl_add_u32 v59, v33, 4, v59")
    a("s_lshl_b32 s68, s30, 12"); a(f"s_add_u32 s68, s68, {W_A}")
    a("s_lshl_b32 s69, s49, 4"); a("s_add_u32 s69, s69, 34")
    a("v_mov_b32 v44, 0"); a("v_mov_b32 v45, 0")
    a("s_waitcnt lgkmcnt(0)")
    a(f"s_add_u32 s48, s48, {TAG_INC}")
    a("v_mov_b32 v6, s48")
    if cfg.use_local:
        a("s_getreg_b32 s44, hwreg(HW_REG_XCC_ID, 0, 4)")
        a("s_lshl_b32 s51, s28, 12"); a(f"s_add_u32 s70, s51, {W_X}")
        a("v_and_b32 v232, 31, v1"); a("v_lshlrev_b32 v232, 7, v232"); a("v_mov_b32 v89, 0")
        a("s_cmp_eq_u32 s49, 2"); a("s_cbranch_scc0 L_nox")
        a("s_lshl_b32 s51, s29, 7"); a("s_add_u32 s51, s51, s70")
        a("v_mov_b32 v60, s44"); a("v_mov_b32 v61, 0"); a("v_mov_b32 v62, 0"); a("v_mov_b32 v63, v6")
        a("s_mov_b64 exec, 1")
        a("buffer_store_dwordx4 v[60:63], v89, s[32:35], s51 offen sc1")
        FULL()
        a("s_waitcnt vmcnt(1)"); a("s_branch L_xw1")
        a("L_nox:")
    a("s_cmp_eq_u32 s71, 0"); a("s_cbranch_scc1 L_xw0")
    a("s_waitcnt vmcnt(CODE_KB)"); a("s_branch L_xw1")
    a("L_xw0:"); a("s_waitcnt vmcnt(0)"); a("L_xw1:")
    stamp(1)
    if cfg.pretouch:
        a("s_cmp_eq_u32 s49, 1"); a("s_cbranch_scc0 L_nopt")
        a("v_lshlrev_b32 v33, 6, v1")
        a("buffer_load_dword v244, v33, s[32:35], s68 offen sc1")
        a("L_nopt:")
    a("v_lshlrev_b32 v28, 16, v20")
    a("v_and_b32 v29, 0xffff0000, v20")
    a("v_readfirstlane_b32 s52, v28")
    for k in range(1, 8):
        a(f"v_lshlrev_b32 v{28+2*k}, 16, v{20+k}"); a(f"v_and_b32 v{29+2*k}, 0xffff0000, v{20+k}")
    a("s_mov_b32 exec_hi, 15")
    for k in range(8): a(f"v_pk_add_f32 v[{64+2*k}:{65+2*k}], v[{28+2*k}:{29+2*k}], s[52:53] op_sel_hi:[1,0] neg_lo:[0,1] neg_hi:[0,1]")
    a("v_pk_mul_f32 v[46:47], v[64:65], v[64:65]")
    for k in range(1, 8): a(f"v_pk_fma_f32 v[46:47], v[{64+2*k}:{65+2*k}], v[{64+2*k}:{65+2*k}], v[46:47]")
    for k in range(4): a(f"v_pk_add_f32 v[{64+2*k}:{65+2*k}], v[{64+2*k}:{65+2*k}], v[{72+2*k}:{73+2*k}]")
    a("v_pk_add_f32 v[64:65], v[64:65], v[66:67]"); a("v_pk_add_f32 v[68:69], v[68:69], v[70:71]"); a("v_pk_add_f32 v[64:65], v[64:65], v[68:69]")
    a("v_add_f32 v44, v64, v65"); a("v_add_f32 v45, v46, v47")
    FULL()
    red2("v_add_f32", 44, 45, 46, 47)
    a("v_mul_f32 v44, 0x3ae38e39, v44"); a("v_mul_f32 v45, 0x3ae38e39, v45")
    a("v_fma_f32 v45, -v44, v44, v45"); a("v_add_f32 v44, s52, v44")
    ln_final(44, 45, 46)
    for k in range(8): a(f"v_pk_add_f32 v[{28+2*k}:{29+2*k}], v[{28+2*k}:{29+2*k}], v[44:45] op_sel_hi:[1,0] neg_lo:[0,1] neg_hi:[0,1]")
    for k in range(8): a(f"v_cvt_pk_bf16_f32 v{20+k}, v{28+2*k}, v{29+2*k}")
    for k in range(8):
        a(f"v_lshlrev_b32 v{28+2*k}, 16, v{20+k}"); a(f"v_and_b32 v{29+2*k}, 0xffff0000, v{20+k}")
    for k in range(8): a(f"v_pk_mul_f32 v[{28+2*k}:{29+2*k}], v[{28+2*k}:{29+2*k}], v[44:45] op_sel:[0,1] op_sel_hi:[1,1]")
    for k in range(8): a(f"v_cvt_pk_bf16_f32 v{20+k}, v{28+2*k}, v{29+2*k}")
    a("s_mov_b32 exec_hi, 15")
    a("ds_write_b128 v50, v[20:23]"); a("ds_write_b128 v50, v[24:27] offset:16")
    FULL()
    stamp(2)
    for r in range(4): a(f"v_mov_b32 v{60+r}, 0")
    wait_prog_s(18)
    for t in range(9):
        a(f"ds_read_b64 v[{20+2*t}:{21+2*t}], v51 offset:{32*t}")
        a(f"ds_read_b64_tr_b16 v[{64+2*t}:{65+2*t}], v7 offset:{L_WQ + 2048*t}")
    for t in range(9):
        if t in (0, 3, 6): a(f"s_waitcnt lgkmcnt({min(15, 2*(6-t))})")
        a(f"v_mfma_f32_16x16x16_bf16 v[60:63], v[{64+2*t}:{65+2*t}], v[{20+2*t}:{21+2*t}], v[60:63]")
    pack_gran(224, 60)
    J0()
    QST = "buffer_store_dwordx4 v[224:227], v57, s[32:35], s65 offen"
    if not cfg.nopub: a(QST if (cfg.use_local or "A" in cfg.force_local) else QST + " sc1")
    FULL()
    a("s_mov_b32 s45, 0")
    if cfg.use_local:
        a("s_cmp_eq_u32 s49, 2"); a("s_cbranch_scc0 L_nox2")
        a("buffer_load_dwordx4 v[228:231], v232, s[32:35], s70 offen sc1")
        a("L_nox2:")
    def restore_q():
        J0(); a(QST + " sc1"); FULL()
    def loc_check(vreg):
        L = a.label("Lc")
        a(f"v_readfirstlane_b32 s52, v{vreg}")
        a("s_cmp_lg_u32 s45, 0"); a(f"s_cbranch_scc1 {L}")
        a("s_mov_b32 s45, s52")
        a("s_cmp_eq_u32 s52, 2"); a(f"s_cbranch_scc0 {L}")
        restore_q()
        a(f"{L}:")
    stamp(3)
    wait_prog_s("s69")
    for t in range(4):
        for c in range(4):
            a(f"ds_read_b128 v[{64+16*t+4*c}:{67+16*t+4*c}], v{10+c} offset:{4096*t}")
    a("s_waitcnt lgkmcnt(0)")
    arrive(F_KFREE)
    if cfg.use_local:
        a("s_cmp_eq_u32 s49, 2"); a("s_cbranch_scc0 L_nox3")
        L = a.label("Lx"); a(f"{L}:")
        a("s_waitcnt vmcnt(0)")
        a("v_cmp_ne_u32 vcc, v231, v6"); a(f"s_cbranch_vccz {L}d")
        a("buffer_load_dwordx4 v[228:231], v232, s[32:35], s70 offen sc1")
        spin_tail(L)
        a(f"{L}d:")
        a("v_cmp_ne_u32 vcc, s44, v228"); a("v_cmp_ne_u32 s[56:57], v231, v6"); a("s_or_b64 vcc, vcc, s[56:57]")
        a("s_cmp_eq_u64 vcc, 0"); a("s_cselect_b32 s51, 1, 2")
        a("v_mov_b32 v228, s51")
        a("s_mov_b64 exec, 1")
        a(f"ds_write_b32 v4, v228 offset:{F_LOC}")
        FULL()
        a("L_nox3:")
    a("s_cmp_eq_u32 s49, 0"); a("s_cbranch_scc0 L_noq")
    a("v_lshlrev_b32 v14, 4, v1"); a("v_lshlrev_b32 v19, 3, v1"); a("v_add_u32 v19, v19, v4")
    L = a.label("Lg"); a(f"{L}:")
    if cfg.qsleep: a(f"s_sleep {cfg.qsleep}")
    if not cfg.nogather:
        for kp in range(4): a(f"buffer_load_dwordx4 v[{20+4*kp}:{23+4*kp}], v14, s[32:35], s68 offen offset:{1024*kp} sc1")
    if cfg.use_local: a(f"ds_read_b32 v37, v4 offset:{F_LOC}")
    a("s_waitcnt vmcnt(0) lgkmcnt(0)")
    if not cfg.noqcheck:
        chk([20, 24, 28, 32], 36)
        a(f"s_cbranch_vccz {L}d")
        if cfg.use_local: loc_check(37)
        spin_tail(L)
        a(f"{L}d:")
    for kp in range(4): unpack_b(40+kp, 20+4*kp)
    a("v_pk_add_f32 v[20:21], v[20:21], v[24:25]"); a("v_pk_add_f32 v[28:29], v[28:29], v[32:33]"); a("v_pk_add_f32 v[20:21], v[20:21], v[28:29]")
    a("v_pk_add_f32 v[40:41], v[40:41], v[42:43]"); a("v_add_f32 v40, v40, v41")
    a("v_add_f32 v22, v22, v26"); a("v_add_f32 v30, v30, v34"); a("v_add_f32 v22, v22, v30")
    a("v_cvt_pk_bf16_f32 v48, v20, v40"); a("v_cvt_pk_bf16_f32 v49, v21, v22")
    a(f"ds_write_b64 v19, v[48:49] offset:{O_Q}")
    arrive(F_QRDY)
    a("L_noq:")
    if cfg.use_local:
        L = a.label("Lq"); a(f"{L}:")
        a(f"ds_read_b64 v[36:37], v4 offset:{F_QRDY}"); a("s_waitcnt lgkmcnt(0)")
        loc_check(37)
        a("v_readfirstlane_b32 s51, v36"); a("s_cmp_ge_i32 s51, 1"); a(f"s_cbranch_scc1 {L}d")
        spin_tail(L)
        a(f"{L}d:")
    for r in range(16): a(f"v_mov_b32 v{144+r}, 0")
    if not cfg.use_local: wait_flag(F_QRDY, 1)
    stamp(4)
    for c in range(4): a(f"ds_read_b128 v[{128+4*c}:{131+4*c}], v52 offset:{O_Q + 64*c}")
    a(f"s_mov_b32 s52, {SCALE:#x}"); a(f"s_mov_b32 s54, {LOG2E:#x}")
    for c in range(4):
        a(f"s_waitcnt lgkmcnt({3-c})")
        for t in range(4):
            a(f"v_mfma_f32_16x16x32_bf16 v[{144+4*t}:{147+4*t}], v[{64+16*t+4*c}:{67+16*t+4*c}], v[{128+4*c}:{131+4*c}], v[{144+4*t}:{147+4*t}]")
    for k in range(8): a(f"v_cvt_pk_bf16_f32 v{20+k}, v{144+2*k}, v{145+2*k}")
    for k in range(8):
        a(f"v_lshlrev_b32 v{144+2*k}, 16, v{20+k}"); a(f"v_and_b32 v{145+2*k}, 0xffff0000, v{20+k}")
    for k in range(8): a(f"v_pk_mul_f32 v[{144+2*k}:{145+2*k}], v[{144+2*k}:{145+2*k}], s[52:53] op_sel_hi:[1,0]")
    for k in range(8): a(f"v_cvt_pk_bf16_f32 v{20+k}, v{144+2*k}, v{145+2*k}")
    for k in range(8):
        a(f"v_lshlrev_b32 v{144+2*k}, 16, v{20+k}"); a(f"v_and_b32 v{145+2*k}, 0xffff0000, v{20+k}")
    a("v_max3_f32 v20, v144, v145, v146")
    for k in range(147, 159, 2): a(f"v_max3_f32 v20, v20, v{k}, v{k+1}")
    a("v_max_f32 v20, v20, v159")
    xrow_red("v_max_f32", 20, 21)
    a("s_mov_b64 exec, 3")
    a(f"ds_write_b32 v54, v20 offset:{O_MX}")
    a("s_mov_b64 exec, 1")
    a(f"ds_add_u32 v4, v5 offset:{F_MAXR}")
    FULL()
    wait_flag(F_MAXR, 4)
    a(f"ds_read_b128 v[24:27], v53 offset:{O_MX}")
    a("s_waitcnt lgkmcnt(0)")
    a("v_max3_f32 v23, v24, v25, v26"); a("v_max_f32 v22, v23, v27"); a("v_max_f32 v23, v23, v27")
    for k in range(8): a(f"v_pk_add_f32 v[{144+2*k}:{145+2*k}], v[{144+2*k}:{145+2*k}], v[22:23] neg_lo:[0,1] neg_hi:[0,1]")
    for k in range(8): a(f"v_pk_mul_f32 v[{144+2*k}:{145+2*k}], v[{144+2*k}:{145+2*k}], s[54:55] op_sel_hi:[1,0]")
    for k in range(16): a(f"v_exp_f32 v{144+k}, v{144+k}")
    for k in range(8): a(f"v_cvt_pk_bf16_f32 v{24+k}, v{144+2*k}, v{145+2*k}")
    J01()
    a(f"ds_write_b128 v56, v[24:27] offset:{O_P}"); a(f"ds_write_b128 v56, v[28:31] offset:{O_P+128}")
    FULL()
    for k in range(4): a(f"v_pk_add_f32 v[{144+2*k}:{145+2*k}], v[{144+2*k}:{145+2*k}], v[{152+2*k}:{153+2*k}]")
    a("v_pk_add_f32 v[144:145], v[144:145], v[146:147]"); a("v_pk_add_f32 v[148:149], v[148:149], v[150:151]"); a("v_pk_add_f32 v[144:145], v[144:145], v[148:149]")
    a("v_add_f32 v20, v144, v145")
    xrow_red("v_add_f32", 20, 21)
    a("s_mov_b64 exec, 3")
    a(f"ds_write_b32 v54, v20 offset:{O_LS}")
    a("s_mov_b64 exec, 1")
    a(f"ds_add_u32 v4, v5 offset:{F_PRDY}")
    FULL()
    for r in range(8): a(f"v_mov_b32 v{112+r}, 0")
    wait_flag(F_PRDY, 4)
    stamp(5)
    if cfg.use_local:
        L = a.label("Lq"); a(f"{L}:")
        a("s_cmp_lg_u32 s45, 0"); a(f"s_cbranch_scc1 {L}d")
        a(f"ds_read_b32 v37, v4 offset:{F_LOC}"); a("s_waitcnt lgkmcnt(0)")
        loc_check(37)
        spin_tail(L)
        a(f"{L}d:")
    for u in range(8): a(f"ds_read_b128 v[{64+4*u}:{67+4*u}], v55 offset:{O_P + 128*u}")
    a(f"ds_read_b128 v[24:27], v53 offset:{O_LS}")
    a("v_mov_b32 v123, v6"); a("v_mov_b32 v30, 0"); a("v_mov_b32 v31, v6"); a("v_mov_b32 v28, v23")
    a("s_waitcnt lgkmcnt(0)")
    a("v_pk_add_f32 v[24:25], v[24:25], v[26:27]"); a("v_add_f32 v29, v24, v25")
    for grp in ([] if cfg.nopv else cfg.pvgroups):
        wait_prog_s(82 + 8*(grp[-1]+1))
        for u in grp:
            fb = 160 + 8*u
            a(f"ds_read_b64_tr_b16 v[{fb}:{fb+1}], v8 offset:{8192*u}")
            a(f"ds_read_b64_tr_b16 v[{fb+2}:{fb+3}], v8 offset:{8192*u+4096}")
            a(f"ds_read_b64_tr_b16 v[{fb+4}:{fb+5}], v9 offset:{8192*u}")
            a(f"ds_read_b64_tr_b16 v[{fb+6}:{fb+7}], v9 offset:{8192*u+4096}")
        n = 4*len(grp)
        for k, u in enumerate(grp):
            fb = 160 + 8*u
            a(f"s_waitcnt lgkmcnt({min(15, n - 4*k - 2)})")
            a(f"v_mfma_f32_16x16x32_bf16 v[112:115], v[{fb}:{fb+3}], v[{64+4*u}:{67+4*u}], v[112:115]")
            a(f"s_waitcnt lgkmcnt({min(15, n - 4*k - 4)})")
            a(f"v_mfma_f32_16x16x32_bf16 v[116:119], v[{fb+4}:{fb+7}], v[{64+4*u}:{67+4*u}], v[116:119]")
    a("s_mov_b32 s52, 0xcccccccc"); a("s_mov_b32 s53, 0xcccccccc")
    for r in range(4): a(f"v_cndmask_b32 v{112+r}, v{112+r}, v{116+r}, s[52:53]")
    a("s_mov_b32 exec_lo, 0x000f000f"); a("s_mov_b32 exec_hi, 0x000f000f")
    a("v_perm_b32 v120, v112, v113, s60"); a("v_perm_b32 v121, v114, v113, s61"); a("v_perm_b32 v122, v115, v113, s62")
    if not cfg.nopub2: lstore("buffer_store_dwordx4 v[120:123], v58, s[32:35], s66 offen", "B")
    a("s_cmp_eq_u32 s49, 0"); a("s_cbranch_scc0 L_noml")
    a("s_mov_b64 exec, 0xffff")
    if not cfg.nopub2: lstore("buffer_store_dwordx4 v[28:31], v59, s[32:35], s67 offen", "B")
    a("L_noml:")
    FULL()
    arrive(F_VFREE)
    stamp(6)
    if cfg.ackstamp:
        a("s_waitcnt vmcnt(0)"); stamp(2)
    if cfg.stop_after == "attn": a("s_branch L_fin")
    a("s_cmp_lt_u32 s29, 18"); a("s_cbranch_scc1 L_F")
    a("s_cmp_lt_u32 s29, 27"); a("s_cbranch_scc1 L_S")

    a("s_cmp_eq_u32 s49, 0"); a("s_cbranch_scc0 L_fin")
    a("s_mul_i32 s65, s28, 5"); a("s_add_u32 s65, s65, s29"); a("s_sub_u32 s65, s65, 27")
    a("s_cmp_lt_u32 s65, 36"); a("s_cbranch_scc0 L_fin")
    a("v_bfe_u32 v14, v1, 2, 3"); a("v_mul_u32_u24 v14, 2304, v14"); a("v_and_b32 v15, 3, v1"); a("v_lshl_add_u32 v14, v15, 4, v14")
    a("s_lshl_b32 s66, s65, 6"); a(f"s_add_u32 s66, s66, {W_C}")
    L = a.label("Lg"); a(f"{L}:")
    a("s_sleep 4")
    a("buffer_load_dwordx4 v[20:23], v14, s[32:35], s66 offen sc1")
    a("s_waitcnt vmcnt(0)")
    tagcheck([20], 36, L)
    unpack_b(24, 20)
    a("v_mov_b32 v25, v21"); a("v_mov_b32 v26, v22"); a("v_mov_b32 v23, v20")
    for s_ in (4, 8):
        for r in range(4): a(f"v_add_f32_dpp v{23+r}, v{23+r}, v{23+r} row_ror:{s_} {DPP}")
    for r in range(4): a(f"v_mov_b32 v{40+r}, v{23+r}")
    for r in range(4): a(f"v_permlane16_swap_b32 v{23+r}, v{40+r}")
    for r in range(4): a(f"v_add_f32 v{23+r}, v{23+r}, v{40+r}")
    rnd2(23, 24, 36); rnd2(25, 26, 36)
    a("v_lshlrev_b32 v28, 16, v16"); a("v_and_b32 v29, 0xffff0000, v16"); a("v_lshlrev_b32 v30, 16, v17"); a("v_and_b32 v31, 0xffff0000, v17")
    for r in range(4): a(f"v_add_f32 v{28+r}, v{28+r}, v{23+r}")
    rnd2(28, 29, 36); rnd2(30, 31, 36)
    stamp(7)
    a("v_lshlrev_b32 v14, 4, v1")
    a("s_mul_i32 s66, s65, 9216"); a(f"s_add_u32 s66, s66, {W_D}"); a("s_add_u32 s67, s66, 4096"); a("s_add_u32 s68, s66, 8192")
    a("s_lshl_b32 s69, s65, 5"); a("v_and_b32 v19, 3, v1"); a("v_lshlrev_b32 v19, 3, v19"); a("v_mov_b32 v18, 0")
    def rolling(nsets, nloads, emit, check, tail, pre=None, between=None):
        L = a.label("Lr")
        for k in range(nsets):
            emit(k)
            if k == 0 and between: between()
        a(f"{L}:")
        for k in range(nsets):
            if cfg.debug: a("s_add_u32 s46, s46, 1")
            if pre: pre(k)
            a(f"s_waitcnt vmcnt({(nsets-1)*nloads})")
            check(k)
            a(f"s_cbranch_vccz {L}s{k}")
            emit(k)
        spin_tail(L)
        for k in range(nsets):
            a(f"{L}s{k}:")
            tail(k)
            if k < nsets - 1: a(f"s_branch {L}j")
        a(f"{L}j:")
    ZS = [64, 100, 136][:cfg.zsets]
    def z_emit(k):
        for i9 in range(9):
            q = ZS[k] + 4*i9
            a(f"buffer_load_dwordx4 v[{q}:{q+3}], v14, s[32:35], s{66+i9//4} offen offset:{1024*(i9%4)} sc1")
    def z_tail(k):
        b = ZS[k]
        stamp(8)
        for q in range(9): unpack_b(40+q, b+4*q)
        for q in range(1, 9): a(f"v_pk_add_f32 v[{b}:{b+1}], v[{b}:{b+1}], v[{b+4*q}:{b+4*q+1}]")
        for q in range(3): a(f"v_pk_add_f32 v[40:41], v[40:41], v[{42+2*q}:{43+2*q}]")
        a("v_add_f32 v33, v40, v41"); a("v_add_f32 v33, v33, v48")
        a(f"v_add_f32 v35, v{b+2}, v{b+6}")
        for q in range(2, 9): a(f"v_add_f32 v35, v35, v{b+2+4*q}")
        a(f"v_mov_b32 v32, v{b}"); a(f"v_mov_b32 v34, v{b+1}")
    rolling(len(ZS), 9, z_emit, lambda k: chk([ZS[k]+4*q for q in range(9)], 36), z_tail)
    for s_ in (4, 8):
        for r in range(4): a(f"v_add_f32_dpp v{32+r}, v{32+r}, v{32+r} row_ror:{s_} {DPP}")
    for sw in ("v_permlane16_swap_b32", "v_permlane32_swap_b32"):
        for r in range(4): a(f"v_mov_b32 v{40+r}, v{32+r}")
        for r in range(4): a(f"{sw} v{32+r}, v{40+r}")
        for r in range(0, 4, 2): a(f"v_pk_add_f32 v[{32+r}:{33+r}], v[{32+r}:{33+r}], v[{40+r}:{41+r}]")
    rnd2(32, 33, 36); rnd2(34, 35, 37)
    a("v_pk_add_f32 v[32:33], v[32:33], v[28:29]"); a("v_pk_add_f32 v[34:35], v[34:35], v[30:31]")
    a("v_cvt_pk_bf16_f32 v36, v32, v33"); a("v_cvt_pk_bf16_f32 v37, v34, v35")
    a("s_mov_b64 exec, 15")
    a("buffer_store_dwordx2 v[36:37], v19, s[40:43], s69 offen")
    a("s_cmp_eq_u32 s65, 0"); a("s_cbranch_scc0 L_noep")
    a("s_mov_b64 exec, 1")
    a(f"buffer_store_dword v6, v18, s[32:35], 0 offen offset:{W_EPOCH} sc1")
    a("L_noep:")
    FULL()
    stamp(9)
    a("s_branch L_fin")

    a("L_S:")
    a("v_lshrrev_b32 v32, 2, v2"); a("v_and_b32 v33, 3, v2")
    a("v_lshrrev_b32 v34, 1, v32"); a("v_and_b32 v35, 1, v3"); a("v_lshl_or_b32 v34, v35, 1, v34")
    a("v_lshlrev_b32 v34, 5, v34"); a("v_lshl_add_u32 v34, v33, 3, v34"); a("v_lshl_add_u32 v34, v32, 7, v34"); a("v_lshl_add_u32 v34, v3, 11, v34")
    a("s_lshl_b32 s51, s49, 14"); a("v_add_u32 v28, s51, v34")
    for T in range(1, 4): a(f"v_xor_b32 v{28+T}, {32*T}, v28")
    a("s_lshl_b32 s65, s28, 2"); a("s_add_u32 s65, s65, s49")
    a("s_lshl_b32 s66, s65, 13"); a(f"s_add_u32 s66, s66, {W_B}")
    a("s_lshl_b32 s68, s65, 11"); a(f"s_add_u32 s68, s68, {W_ML}")
    a("v_bfe_u32 v14, v1, 2, 2"); a("v_lshlrev_b32 v14, 11, v14"); a("v_lshl_add_u32 v14, v3, 6, v14"); a("v_and_b32 v35, 3, v1"); a("v_lshl_add_u32 v14, v35, 4, v14")
    a("v_lshlrev_b32 v41, 7, v2")
    a("v_lshlrev_b32 v18, 4, v2")
    a("s_lshl_b32 s51, s49, 8"); a("v_lshl_add_u32 v19, v3, 4, s51"); a("v_add_u32 v19, v19, v4")
    a("v_add_u32 v40, v18, v4")
    a("s_mul_i32 s69, s28, 2304"); a("s_sub_u32 s52, s29, 18"); a("s_lshl_b32 s52, s52, 8"); a("s_add_u32 s69, s69, s52"); a(f"s_add_u32 s69, s69, {W_C}")
    a(f"s_mov_b32 s54, {LOG2E:#x}")
    for r in range(16): a(f"v_mov_b32 v{192+r}, 0")
    a("v_mov_b32 v211, v6")
    wait_prog_s(210)
    for T in range(4):
        for ks in range(4):
            b = 64 + 16*T + 4*ks
            off = L_WQ + 8192*(ks >> 1) + 1024*(ks & 1)
            a(f"ds_read_b64_tr_b16 v[{b}:{b+1}], v{28+T} offset:{off}")
            a(f"ds_read_b64_tr_b16 v[{b+2}:{b+3}], v{28+T} offset:{off + 512}")
    stamp(7)
    SS = [128, 212][:cfg.ssets]
    def s_emit(k):
        b0 = SS[k]
        a(f"buffer_load_dwordx4 v[{b0}:{b0+3}], v41, s[32:35], s68 offen sc1")
        for b in range(2):
            for i4 in range(4):
                q = b0 + 4 + 16*b + 4*i4
                a(f"buffer_load_dwordx4 v[{q}:{q+3}], v14, s[32:35], s66 offen offset:{512*i4 + 256*b} sc1")
    def s_pre(k):
        b0 = SS[k]
        a(f"s_waitcnt vmcnt({(len(SS)-1)*9 + 8})")
        a(f"v_mov_b32 v32, v{b0}")
        row_red("v_max_f32", 32)
        a(f"v_sub_f32 v33, v{b0}, v32"); a("v_mul_f32 v33, s54, v33"); a("v_exp_f32 v33, v33")
        a(f"v_mul_f32 v34, v33, v{b0+1}")
        row_red("v_add_f32", 34)
        a("v_rcp_f32 v34, v34"); a("v_mul_f32 v33, v33, v34")
    def s_tail(k):
        b0 = SS[k]
        stamp(8)
        for q in range(8): unpack_b(164+q, b0+4+4*q)
        for i4 in range(4):
            for b in range(2):
                q = b0 + 4 + 16*b + 4*i4
                srcs = [q, 164+4*b+i4, q+1, q+2]
                for r in range(4):
                    op = "v_mul_f32_dpp" if i4 == 0 else "v_fmac_f32_dpp"
                    a(f"{op} v{172+4*b+r}, v33, v{srcs[r]} quad_perm:[{i4},{i4},{i4},{i4}] {DPP}")
    rolling(len(SS), 9, s_emit, lambda k: chk([SS[k]] + [SS[k]+4+4*q for q in range(8)], 32), s_tail, s_pre)
    for s_ in (4, 8):
        for r in range(8): a(f"v_add_f32_dpp v{172+r}, v{172+r}, v{172+r} row_ror:{s_} {DPP}")
    for b in range(2):
        a(f"v_cvt_pk_bf16_f32 v{180+2*b}, v{172+4*b}, v{173+4*b}"); a(f"v_cvt_pk_bf16_f32 v{181+2*b}, v{174+4*b}, v{175+4*b}")
    a("s_waitcnt lgkmcnt(0)")
    BR = [184, 188, 164, 168]
    def bc(ks):
        b, v = ks >> 1, ks & 1
        o = []
        for hh in range(2):
            o.append(f"v_mov_b32_dpp v{BR[ks]+2*hh}, v{180+2*b} row_newbcast:{2*v+hh} {DPP}")
            o.append(f"v_mov_b32_dpp v{BR[ks]+2*hh+1}, v{181+2*b} row_newbcast:{2*v+hh} {DPP}")
        return o
    for x in bc(0): a(x)
    for ks in range(4):
        nxt = bc(ks+1) if ks < 3 else []
        for T in range(4):
            A_ = 64 + 16*T + 4*ks
            a(f"v_mfma_f32_16x16x32_bf16 v[{192+4*T}:{195+4*T}], v[{A_}:{A_+3}], v[{BR[ks]}:{BR[ks]+3}], v[{192+4*T}:{195+4*T}]")
            if nxt: a(nxt[T])
    J0()
    for T in range(4): a(f"ds_write_b128 v19, v[{192+4*T}:{195+4*T}] offset:{O_RED + 64*T}")
    a("s_waitcnt lgkmcnt(0)")
    FULL()
    a("s_barrier")
    a("s_cmp_eq_u32 s49, 0"); a("s_cbranch_scc0 L_fin")
    for w in range(4): a(f"ds_read_b128 v[{64+4*w}:{67+4*w}], v40 offset:{O_RED + 256*w}")
    a("s_waitcnt lgkmcnt(0)")
    a("v_pk_add_f32 v[64:65], v[64:65], v[68:69]"); a("v_pk_add_f32 v[72:73], v[72:73], v[76:77]")
    a("v_pk_add_f32 v[66:67], v[66:67], v[70:71]"); a("v_pk_add_f32 v[74:75], v[74:75], v[78:79]")
    a("v_pk_add_f32 v[64:65], v[64:65], v[72:73]"); a("v_pk_add_f32 v[66:67], v[66:67], v[74:75]")
    a("s_mov_b64 exec, 0xffff")
    a("v_perm_b32 v208, v64, v65, s60"); a("v_perm_b32 v209, v66, v65, s61"); a("v_perm_b32 v210, v67, v65, s62")
    a("buffer_store_dwordx4 v[208:211], v18, s[32:35], s69 offen sc1")
    FULL()
    stamp(9)
    a("s_branch L_fin")

    a("L_F:")
    a("s_and_b32 s65, s29, 1")
    a("s_lshr_b32 s66, s29, 1"); a("s_mul_i32 s67, s28, 9"); a("s_add_u32 s66, s66, s67")
    a(f"v_add_u32 v19, 36864, v7")
    a("v_lshlrev_b32 v40, 1, v18")
    a("v_lshrrev_b32 v14, 3, v18")
    a("v_lshrrev_b32 v34, 3, v14"); a("v_lshlrev_b32 v34, 6, v34")
    a("v_and_b32 v35, 3, v14"); a("v_lshl_add_u32 v34, v35, 4, v34")
    a("v_bfe_u32 v35, v14, 2, 1"); a("v_lshl_add_u32 v34, v35, 3, v34"); a("v_add_u32 v41, v34, v4")
    a("v_lshl_add_u32 v42, v3, 4, v4")
    a("s_lshl_b32 s51, s49, 3"); a("v_add_u32 v43, s51, v4")
    a("v_and_b32 v44, 1, v3"); a("v_lshlrev_b32 v44, 4, v44")
    a("v_and_b32 v62, 3, v2"); a("v_lshl_add_u32 v62, v62, 5, v44")
    a("v_and_b32 v45, 1, v3"); a("v_lshlrev_b32 v45, 3, v45"); a("v_and_b32 v38, 3, v2"); a("v_lshl_add_u32 v45, v38, 1, v45")
    a("s_lshl_b32 s51, s49, 4"); a("v_add_u32 v45, s51, v45"); a("v_add_u32 v45, v45, v4")
    a("v_mul_u32_u24 v46, 36864, v2"); a("v_lshl_add_u32 v46, v3, 4, v46")
    a("v_lshrrev_b32 v28, 2, v2"); a("v_and_b32 v29, 3, v2")
    a("v_lshrrev_b32 v30, 1, v28"); a("v_and_b32 v31, 1, v3"); a("v_lshlrev_b32 v31, 1, v31"); a("v_xor_b32 v30, v30, v31")
    a("v_xor_b32 v30, s49, v30"); a("v_lshlrev_b32 v30, 5, v30"); a("v_lshl_add_u32 v30, v29, 3, v30")
    a("v_lshl_add_u32 v30, v28, 7, v30"); a("v_lshl_add_u32 v30, v3, 10, v30")
    a(f"v_add_u32 v47, {L_V}, v30"); a("v_xor_b32 v30, 64, v30"); a(f"v_add_u32 v48, {L_V+512}, v30")
    a("v_lshlrev_b32 v50, 16, v16"); a("v_and_b32 v51, 0xffff0000, v16"); a("v_lshlrev_b32 v52, 16, v17"); a("v_and_b32 v53, 0xffff0000, v17")
    a("s_lshl_b32 s67, s66, 10"); a("s_lshl_b32 s68, s49, 7"); a("s_add_u32 s67, s67, s68"); a(f"s_add_u32 s67, s67, {W_E}")
    a("s_lshl_b32 s68, s65, 9"); a("s_add_u32 s69, s67, s68")
    a("s_xor_b32 s68, s68, 512"); a("s_add_u32 s70, s67, s68")
    a("s_mul_i32 s51, s28, 18"); a("s_add_u32 s51, s51, s29"); a("s_lshl_b32 s51, s51, 6")
    a("s_mul_i32 s52, s49, 9216"); a("s_add_u32 s51, s51, s52"); a(f"s_add_u32 s68, s51, {W_D}")
    a(f"s_mov_b32 s66, {W_C}"); a(f"s_mov_b32 s67, {W_C + 4*2304}")
    a("v_add_u32 v49, 6912, v40") if False else None
    a("v_mov_b32 v24, 0x3f803f80"); a("v_mov_b32 v25, v24"); a("v_mov_b32 v26, v24"); a("v_mov_b32 v27, v24")
    for r in range(4): a(f"v_mov_b32 v{20+r}, 0"); a(f"v_mov_b32 v{54+r}, 0")
    a("v_mov_b32 v60, 0"); a("v_mov_b32 v61, 0")
    a("v_add_u32 v49, 4608, v40")
    if cfg.pretouch: a("buffer_load_dwordx4 v[244:247], v44, s[32:35], s69 offen sc1")
    def mat_groups(g0, g1):
        for gi in range(g0, g1):
            wait_prog_s(146 + 12*(gi+1))
            for u in range(3*gi, 3*gi+3):
                base, off = (7, 4096*u) if u < 9 else (19, 4096*(u-9))
                a(f"ds_read_b64_tr_b16 v[{64+4*u}:{65+4*u}], v{base} offset:{L_WQ + off}")
                a(f"ds_read_b64_tr_b16 v[{66+4*u}:{67+4*u}], v{base} offset:{L_WQ + off + 2048}")
            for k, u in enumerate(range(3*gi, 3*gi+3)):
                a(f"s_waitcnt lgkmcnt({4 - 2*k})")
                a(f"v_mfma_f32_16x16x32_bf16 v[54:57], v[{64+4*u}:{67+4*u}], v[24:27], v[54:57]")
    mat_groups(0, cfg.cgrp)
    stamp(7)
    if cfg.cpoll:
        a("s_add_u32 s52, s26, %d" % (W_C + 12)); a("s_addc_u32 s53, s27, 0")
        a("s_mul_i32 s51, s49, 576"); a("s_add_u32 s52, s52, s51"); a("s_addc_u32 s53, s53, 0")
        L = a.label("Lp"); a(f"{L}:")
        for p in range(8): a(f"s_load_dword s{88+p}, s[52:53], {2304*p} glc")
        a("s_waitcnt lgkmcnt(0)")
        a("s_xor_b32 s88, s88, s48")
        for p in range(1, 8): a(f"s_xor_b32 s{88+p}, s{88+p}, s48"); a(f"s_or_b32 s88, s88, s{88+p}")
        a("s_cmp_eq_u32 s88, 0"); a(f"s_cbranch_scc1 {L}d")
        spin_tail(L); a(f"{L}d:")
    if cfg.cdelay:
        L = a.label("Lt"); a(f"{L}:")
        a("s_memrealtime s[52:53]"); a("s_waitcnt lgkmcnt(0)"); a("s_sub_u32 s52, s52, s72"); a(f"s_cmp_lt_i32 s52, {cfg.cdelay}"); a(f"s_cbranch_scc1 {L}")
    L = a.label("Lg"); a(f"{L}:")
    if cfg.debug: a("s_add_u32 s46, s46, 256")
    if cfg.csleep: a(f"s_sleep {cfg.csleep}")
    for p in range(8):
        vo = 40 if (p & 2) == 0 else 49
        a(f"buffer_load_dwordx4 v[{208+4*p}:{211+4*p}], v{vo}, s[32:35], s{66+p//4} offen offset:{2304*(p&1)} sc1")
    a("s_waitcnt vmcnt(0)")
    tagcheck([208+4*p for p in range(8)], 32, L)
    stamp(8)
    for p in range(8): unpack_b(136+p, 208+4*p)
    for p in range(1, 8): a(f"v_pk_add_f32 v[208:209], v[208:209], v[{208+4*p}:{209+4*p}]")
    for k in range(3): a(f"v_pk_add_f32 v[136:137], v[136:137], v[{138+2*k}:{139+2*k}]")
    a("v_add_f32 v33, v136, v137")
    a("v_add_f32 v35, v210, v214")
    for p in range(2, 8): a(f"v_add_f32 v35, v35, v{210+4*p}")
    a("v_cvt_pk_bf16_f32 v36, v208, v33"); a("v_cvt_pk_bf16_f32 v37, v209, v35")
    a("v_lshlrev_b32 v28, 16, v36"); a("v_and_b32 v29, 0xffff0000, v36"); a("v_lshlrev_b32 v30, 16, v37"); a("v_and_b32 v31, 0xffff0000, v37")
    a("v_pk_add_f32 v[28:29], v[28:29], v[50:51]"); a("v_pk_add_f32 v[30:31], v[30:31], v[52:53]")
    a("v_cvt_pk_bf16_f32 v36, v28, v29"); a("v_cvt_pk_bf16_f32 v37, v30, v31")
    a("s_mov_b32 exec_hi, 15")
    a(f"ds_write_b64 v41, v[36:37] offset:{O_LN2}")
    a("v_lshlrev_b32 v28, 16, v36"); a("v_and_b32 v29, 0xffff0000, v36"); a("v_lshlrev_b32 v30, 16, v37"); a("v_and_b32 v31, 0xffff0000, v37")
    a("v_readfirstlane_b32 s52, v28")
    a("v_pk_add_f32 v[28:29], v[28:29], s[52:53] op_sel_hi:[1,0] neg_lo:[0,1] neg_hi:[0,1]")
    a("v_pk_add_f32 v[30:31], v[30:31], s[52:53] op_sel_hi:[1,0] neg_lo:[0,1] neg_hi:[0,1]")
    a("v_pk_mul_f32 v[32:33], v[28:29], v[28:29]"); a("v_pk_fma_f32 v[32:33], v[30:31], v[30:31], v[32:33]")
    a("v_pk_add_f32 v[28:29], v[28:29], v[30:31]")
    a("v_add_f32 v60, v28, v29"); a("v_add_f32 v61, v32, v33")
    FULL()
    red2("v_add_f32", 60, 61, 32, 33)
    a("v_mul_f32 v32, 0x3be38e39, v60")
    a("v_fma_f32 v61, -v32, v60, v61")
    a("v_add_f32 v60, s52, v32")
    a("s_mov_b64 exec, 1")
    a(f"ds_write_b64 v43, v[60:61] offset:{O_STAT}")
    a(f"ds_add_u32 v4, v5 offset:{F_LN2}")
    FULL()
    mat_groups(cfg.cgrp, 6)
    wait_flag(F_LN2, 4)
    stamp(9)
    a(f"ds_read_b128 v[28:31], v4 offset:{O_STAT}"); a(f"ds_read_b128 v[32:35], v4 offset:{O_STAT+16}")
    for u in range(18): a(f"ds_read_b128 v[{136+4*u}:{139+4*u}], v42 offset:{O_LN2 + 64*u}")
    fin = ["v_add_f32 v36, v28, v30", "v_add_f32 v37, v32, v34", "v_add_f32 v36, v36, v37", "v_mul_f32 v36, 0x3e800000, v36",
           "v_sub_f32 v28, v28, v36", "v_sub_f32 v30, v30, v36", "v_sub_f32 v32, v32, v36", "v_sub_f32 v34, v34, v36",
           "v_mul_f32 v37, v28, v28", "v_fmac_f32 v37, v30, v30", "v_fmac_f32 v37, v32, v32", "v_fmac_f32 v37, v34, v34",
           "v_add_f32 v29, v29, v31", "v_add_f32 v33, v33, v35", "v_add_f32 v29, v29, v33",
           "v_fmac_f32 v29, 0x43100000, v37", "v_mul_f32 v37, 0x3ae38e39, v29", "v_max_f32 v37, 0, v37",
           "v_cvt_pk_bf16_f32 v38, v37, v36", "v_lshlrev_b32 v37, 16, v38", "v_and_b32 v36, 0xffff0000, v38",
           "v_add_f32 v37, 0x3727c5ac, v37", "v_cvt_pk_bf16_f32 v38, v37, v37", "v_lshlrev_b32 v37, 16, v38",
           "v_sqrt_f32 v37, v37", "v_nop", "v_cvt_pk_bf16_f32 v38, v37, v37", "v_lshlrev_b32 v37, 16, v38", "v_rcp_f32 v37, v37"]
    for u in range(18):
        if u % 2 == 0 or u == 17: a(f"s_waitcnt lgkmcnt({min(15, max(0, 16 - u))})")
        a(f"v_mfma_f32_16x16x32_bf16 v[20:23], v[{64+4*u}:{67+4*u}], v[{136+4*u}:{139+4*u}], v[20:23]")
        for _ in range(2):
            if fin and u >= 1: a(fin.pop(0))
    for x in fin: a(x)
    a("v_pk_fma_f32 v[20:21], v[54:55], v[36:37], v[20:21] op_sel_hi:[1,0,1] neg_lo:[1,0,0] neg_hi:[1,0,0]")
    a("v_pk_fma_f32 v[22:23], v[56:57], v[36:37], v[22:23] op_sel_hi:[1,0,1] neg_lo:[1,0,0] neg_hi:[1,0,0]")
    a("v_pk_mul_f32 v[20:21], v[20:21], v[36:37] op_sel:[0,1] op_sel_hi:[1,1]")
    a("v_pk_mul_f32 v[22:23], v[22:23], v[36:37] op_sel:[0,1] op_sel_hi:[1,1]")
    rnd2(20, 21, 24); rnd2(22, 23, 25)
    a("s_cmp_eq_u32 s65, 0")
    a("s_cselect_b32 exec_lo, 0, 0x000f000f"); a("s_cselect_b32 exec_hi, 0x000f000f, 0")
    pack_gran(24, 20)
    lstore("buffer_store_dwordx4 v[24:27], v62, s[32:35], s70 offen", "E")
    FULL()
    stamp(10)
    def e_between():
        a("s_mov_b32 s52, 0x22222222"); a("s_mov_b32 s53, 0x22222222")
        a("s_mov_b32 s54, 0x44444444"); a("s_mov_b32 s55, 0x44444444")
        a("s_mov_b32 s56, 0x88888888"); a("s_mov_b32 s57, 0x88888888")
        a("s_cmp_eq_u32 s65, 0"); a("s_cselect_b64 s[58:59], 0, -1")
        a("v_cndmask_b32 v34, v20, v21, s[52:53]"); a("v_cndmask_b32 v34, v34, v22, s[54:55]"); a("v_cndmask_b32 v34, v34, v23, s[56:57]")
        for r in range(4): a(f"v_mov_b32 v{20+r}, 0")
        for ck in range(9):
            if ck % 3 == 0: wait_prog_s(218 + 4*(ck+3))
            a(f"ds_read_b64_tr_b16 v[{64+4*ck}:{65+4*ck}], v47 offset:{4096*ck}")
            a(f"ds_read_b64_tr_b16 v[{66+4*ck}:{67+4*ck}], v48 offset:{4096*ck}")
    ES = [100, 104, 108][:cfg.esets]
    rolling(len(ES), 1, lambda k: a(f"buffer_load_dwordx4 v[{ES[k]}:{ES[k]+3}], v44, s[32:35], s69 offen sc1"),
            lambda k: chk([ES[k]], 35),
            lambda k: (a(f"v_mov_b32 v24, v{ES[k]}"), a(f"v_mov_b32 v25, v{ES[k]+1}"), a(f"v_mov_b32 v26, v{ES[k]+2}")), between=e_between)
    stamp(11)
    unpack_b(28, 24)
    a("v_cndmask_b32 v35, v24, v28, s[52:53]"); a("v_cndmask_b32 v35, v35, v25, s[54:55]"); a("v_cndmask_b32 v35, v35, v26, s[56:57]")
    a("v_and_b32 v35, 0xffff0000, v35")
    a("v_cndmask_b32 v36, v34, v35, s[58:59]")
    a("v_cndmask_b32 v37, v35, v34, s[58:59]")
    a("v_mul_f32 v38, v36, v36"); a("v_mov_b32 v39, 1.0"); a("v_fmac_f32 v39, 0x3d372713, v38")
    a("v_mul_f32 v39, v39, v36")
    a("v_mul_f32 v39, 0xc0135761, v39")
    a("v_exp_f32 v39, v39"); a("v_add_f32 v39, 1.0, v39"); a("v_rcp_f32 v39, v39"); a("v_mul_f32 v39, v39, v36")
    rnd1(39, 38)
    a("v_mul_f32 v39, v39, v37"); a("v_cvt_pk_bf16_f32 v39, v39, v39")
    a("s_cmp_eq_u32 s65, 0")
    a("s_cselect_b32 exec_lo, 0x000f000f, 0"); a("s_cselect_b32 exec_hi, 0, 0x000f000f")
    a(f"ds_write_b16 v45, v39 offset:{O_HH}")
    a("s_mov_b32 s52, 0x00010001"); a("s_mov_b32 s53, 0x00010001")
    a("s_waitcnt lgkmcnt(0)")
    FULL()
    a("s_barrier")
    a(f"ds_read_b128 v[24:27], v42 offset:{O_HH}")
    a("v_mov_b32 v43, v6")
    a("s_waitcnt lgkmcnt(0)")
    for ck in range(9):
        B = 28 + 4*(ck & 1)
        for r in range(4): a(f"v_cndmask_b32 v{B+r}, 0, v{24+r}, s[52:53]")
        if ck < 8: a("s_lshl_b64 s[52:53], s[52:53], 1")
        a(f"v_mfma_f32_16x16x32_bf16 v[20:23], v[{64+4*ck}:{67+4*ck}], v[{B}:{B+3}], v[20:23]")
    a("s_mov_b32 exec_lo, 0x01ff01ff"); a("s_mov_b32 exec_hi, 0x01ff01ff")
    a("v_perm_b32 v40, v20, v21, s60"); a("v_perm_b32 v41, v22, v21, s61"); a("v_perm_b32 v42, v23, v21, s62")
    a("buffer_store_dwordx4 v[40:43], v46, s[32:35], s68 offen sc1")
    FULL()

    a("L_fin:")
    if cfg.debug:
        a("s_memrealtime s[96:97]")
        a("s_getreg_b32 s71, hwreg(HW_REG_XCC_ID)")
        a("s_waitcnt lgkmcnt(0) vmcnt(0)")
        a("s_mov_b64 exec, -1")
        a("s_mov_b32 s98, s46")
        srd(44, 26, W_SIZE + 0x100000)
        for k in range(12): a(f"v_mov_b32 v{20+k}, s{72+2*k}")
        a("v_mov_b32 v32, s96"); a("v_mov_b32 v33, s71"); a("v_mov_b32 v34, s50"); a("v_mov_b32 v35, s98")
        a("s_mul_i32 s51, s2, 5"); a("s_add_u32 s51, s51, s3"); a("s_lshl_b32 s51, s51, 6"); a(f"s_add_u32 s51, s51, {W_STAMP}")
        a("v_mov_b32 v14, 0")
        a("s_mov_b64 exec, 1")
        for k in range(4): a(f"buffer_store_dwordx4 v[{20+4*k}:{23+4*k}], v14, s[44:47], s51 offen offset:{16*k}")
    a("s_waitcnt vmcnt(0)")
    a("L_end:")
    a("s_endpgm")
    body = a.text()
    nbytes_est = 0
    head = f"""; sequential pre-LN decode layer: LN -> q -> sliding-window GQA attention -> wo -> LN -> GeGLU FFN
; @launch grid=(256,1,1) block=(320,1,1) lds={LDS_BYTES}
.amdgcn_target "amdgcn-amd-amdhsa--gfx950"
.set CODE_KB, {cfg.code_kb if hasattr(cfg, 'code_kb') else 14}
.text
.globl {NAME}
.p2align 8
.type {NAME},@function
{NAME}:
"""
    tail = '.section .rodata,"a"\n.p2align 6\n' + KD.format(name=NAME, vgpr=256, sgpr=100, accum=256)
    return head + body + tail

if __name__ == "__main__":
    dbg = "debug" in sys.argv
    s = gen(Cfg(debug=dbg))
    out = sys.argv[1] if len(sys.argv) > 1 else "sequential_preLN__sliding_block_cached__glu_gated_geglu__decode.s"
    open(out, "w").write(s)
    print("wrote", out, len(s), "bytes")
```

```python
import sys
from asmb import Asm, KD

NAME = "sequential_preLN__sliding_block_cached__glu_gated_geglu__decode_kernel"

L_WQ, L_K, L_V, L_SCR = 0, 18432, 83968, 149504
LDS_BYTES = 163840
O_PROG = 0
O_FL = 256
F_KFREE, F_VFREE, F_QRDY, F_LOC, F_MAXR, F_PRDY, F_RED, F_ST, F_LN2, F_HH, F_GO = [O_FL + 4*k for k in range(11)]
O_LN1 = 512
O_Q = 1664
O_MX = 2176
O_LS = 2208
O_P = 2304
O_LN2 = 3328
O_RED = 4480
O_STAT = 5504
O_HH = 5568
W_EPOCH = 0
W_A = 0x1000
W_B = 0x20000
W_ML = 0x60000
W_C = 0x70000
W_E = 0x78000
W_D = 0x90000
W_X = 0xF0000
W_H = 0xF8000
W_SIZE = 0x100000
W_STAMP = 0x100000
TAG_INC = 0x9E3779B9
SCALE = 0x3DB504F3
LOG2E = 0x3FB8AA3B

class Cfg:
    W = 24
    WF = 40
    WS = 40
    WS0 = 36
    nt = True
    debug = False
    budget = 2000000
    prefetch_code = False
    cpoll = False
    zsets = 1
    ssets = 1
    esets = 2
    pvgroups = [[0,1,2,3],[4,5],[6],[7]]
    WF1 = 16
    NF1 = 24
    nopub = False
    cgrp = 6
    hintC = False
    hintD = None
    hsleep = 1
    hscalar = True
    pf_top = True
    Wlate = 0
    WS0late = 40
    cdelay = 0
    zpf = 0
    kfirst = 0
    zwo = 0
    WD = 0
    pretouch = True
    transposed = False
    use_local = True
    ackstamp = False
    force_local = ''
    nopub2 = False
    nopv = False
    nogather = False
    lsleep = 0
    qsleep = 0
    noqcheck = False
    stop_after = None
    loader_only = False
    rot = 0
    csleep = 0
    def __init__(self, **k):
        for a, b in k.items(): setattr(self, a, b)

def gen(cfg):
    a = Asm()
    ntf = " nt" if cfg.nt else ""
    nstamp = [0]
    def stamp(k):
        if cfg.debug:
            a(f"s_memrealtime s[{72+2*k}:{73+2*k}]")
    def srd(d, p, size):
        a(f"s_mov_b32 s{d}, s{p}"); a(f"s_mov_b32 s{d+1}, s{p+1}")
        a(f"s_mov_b32 s{d+2}, {size}"); a(f"s_mov_b32 s{d+3}, 0x20000")
    def spin_tail(L):
        a("s_sub_u32 s50, s50, 1")
        a(f"s_cbranch_scc0 {L}")
        a("s_mov_b32 s50, 0")
    def wait_flag(off, n, vt=15, signed=False):
        L = a.label("Lw")
        a(f"{L}:")
        if cfg.lsleep: a(f"s_sleep {cfg.lsleep}")
        a(f"ds_read_b32 v{vt}, v4 offset:{off}")
        a("s_waitcnt lgkmcnt(0)")
        a(f"v_readfirstlane_b32 s51, v{vt}")
        a(f"s_cmp_ge_i32 s51, {n}")
        a(f"s_cbranch_scc1 {L}d")
        spin_tail(L)
        a(f"{L}d:")
    def arrive(off):
        a("s_mov_b64 exec, 1")
        a(f"ds_add_u32 v4, v5 offset:{off}")
        a("s_mov_b64 exec, -1")
    def row_red(op, v, steps=(8, 4, 2, 1)):
        for s in steps:
            a(f"{op}_dpp v{v}, v{v}, v{v} row_ror:{s} row_mask:0xf bank_mask:0xf")
    def xrow_red(op, v, t):
        a(f"v_mov_b32 v{t}, v{v}"); a(f"v_permlane16_swap_b32 v{v}, v{t}"); a(f"{op} v{v}, v{v}, v{t}")
        a(f"v_mov_b32 v{t}, v{v}"); a(f"v_permlane32_swap_b32 v{v}, v{t}"); a(f"{op} v{v}, v{v}, v{t}")
    def all_red(op, v, t):
        row_red(op, v); xrow_red(op, v, t)
    def rnd1(v, t):
        a(f"v_cvt_pk_bf16_f32 v{t}, v{v}, v{v}"); a(f"v_lshlrev_b32 v{v}, 16, v{t}")
    def rnd2(x, y, t):
        a(f"v_cvt_pk_bf16_f32 v{t}, v{x}, v{y}"); a(f"v_lshlrev_b32 v{x}, 16, v{t}"); a(f"v_and_b32 v{y}, 0xffff0000, v{t}")
    def pack_gran(d, q):
        a(f"v_perm_b32 v{d}, v{q}, v{q+1}, s60")
        a(f"v_perm_b32 v{d+1}, v{q+2}, v{q+1}, s61")
        a(f"v_perm_b32 v{d+2}, v{q+3}, v{q+1}, s62")
        a(f"v_mov_b32 v{d+3}, v6")
    def unpack_b(dst, gq):
        a(f"v_perm_b32 v{dst}, v{gq+2}, v{gq+1}, s63")
        a(f"v_perm_b32 v{dst}, v{dst}, v{gq}, s64")
    def tagcheck(grs, acc, L):
        a(f"v_xor_b32 v{acc}, v{grs[0]+3}, v6")
        for gq in grs[1:]:
            a(f"v_bitop3_b32 v{acc}, v{gq+3}, v6, v{acc} bitop3:0xbe")
        a(f"v_cmp_ne_u32 vcc, 0, v{acc}")
        a(f"s_cbranch_vccz {L}d")
        spin_tail(L)
        a(f"{L}d:")

    if cfg.debug:
        for k in range(72, 99): a(f"s_mov_b32 s{k}, 0")
    stamp(0)
    a("s_cmp_ge_u32 s2, 256"); a("s_cbranch_scc1 L_end")
    a("s_load_dwordx16 s[4:19], s[0:1], 0")
    a("s_load_dwordx8 s[20:27], s[0:1], 64")
    if cfg.prefetch_code and cfg.pf_top:
        a("s_lshr_b32 s3, s2, 3"); a("s_cmp_ge_u32 s3, 28"); a("s_cbranch_scc0 L_nopf")
        a("v_cmp_le_u32 vcc, 64, v0"); a("s_cbranch_vccz L_nopf")
        a("s_getpc_b64 s[52:53]")
        a("s_and_b32 s52, s52, 0xffffff00")
        a("s_sub_u32 s3, s3, 28"); a("s_lshl_b32 s3, s3, 12")
        a("v_subrev_u32 v15, 64, v0"); a("v_lshlrev_b32 v15, 4, v15"); a("v_add_u32 v15, s3, v15")
        a("v_cmp_gt_u32 vcc, CODE_BYTES, v15"); a("s_and_saveexec_b64 s[54:55], vcc"); a("s_cbranch_execz L_pfx")
        a("global_load_dwordx4 v[252:255], v15, s[52:53]")
        a("L_pfx:")
        a("s_mov_b64 exec, s[54:55]")
        a("v_add_u32 v15, 16384, v15")
        a("v_cmp_gt_u32 vcc, CODE_BYTES, v15"); a("s_and_saveexec_b64 s[54:55], vcc"); a("s_cbranch_execz L_pfy")
        a("global_load_dwordx4 v[252:255], v15, s[52:53]")
        a("L_pfy:")
        a("s_mov_b64 exec, s[54:55]")
        a("L_nopf:")
    a("v_lshrrev_b32 v2, 6, v0")
    a("v_and_b32 v1, 63, v0")
    if cfg.transposed: a("s_lshr_b32 s28, s2, 5")
    else: a("s_and_b32 s28, s2, 7")
    a("v_readfirstlane_b32 s3, v2")
    if cfg.transposed: a("s_and_b32 s29, s2, 31")
    else: a("s_lshr_b32 s29, s2, 3")
    a("s_lshr_b32 s30, s29, 4"); a("s_lshl_b32 s31, s28, 1"); a("s_add_u32 s30, s30, s31")
    a("s_and_b32 s31, s29, 15")
    a(f"s_mov_b32 s50, {cfg.budget}")
    a(f"v_mov_b32 v4, {L_SCR}")
    a("s_cmp_eq_u32 s3, 0"); a("s_cbranch_scc0 L_compute")

    a("s_setprio 3")
    a("v_mov_b32 v6, 0"); a("v_mov_b32 v7, 0")
    a("v_lshl_add_u32 v5, v1, 3, v4")
    a("ds_write_b64 v5, v[6:7]")
    a("v_lshrrev_b32 v2, 3, v1"); a("v_and_b32 v3, 7, v1")
    a("v_bfe_u32 v8, v2, 1, 2"); a("v_lshlrev_b32 v8, 1, v8"); a("v_xor_b32 v3, v3, v8"); a("v_lshlrev_b32 v3, 4, v3")
    a("v_lshl_add_u32 v10, v2, 13, v3")
    a("v_mul_u32_u24 v8, 1152, v2"); a("v_add_u32 v11, v8, v3")
    a("v_xor_b32 v19, 64, v11")
    a("v_mul_u32_u24 v8, 9216, v2"); a("v_add_u32 v18, v8, v3")
    a("v_lshrrev_b32 v2, 4, v1"); a("v_and_b32 v3, 15, v1")
    a("v_xor_b32 v8, v3, v2"); a("v_lshlrev_b32 v8, 4, v8"); a("v_lshl_add_u32 v12, v2, 8, v8")
    a("v_xor_b32 v13, 64, v12"); a("v_xor_b32 v14, 0x80, v12"); a("v_xor_b32 v15, 0xc0, v12")
    a("v_lshlrev_b32 v8, 1, v2"); a("v_xor_b32 v8, v3, v8"); a("v_lshlrev_b32 v8, 4, v8"); a("v_lshl_add_u32 v16, v2, 8, v8")
    a("v_xor_b32 v17, 0x80, v16")
    a("v_lshl_add_u32 v21, v1, 2, v4")
    a("s_lshr_b32 s64, s31, 2"); a(f"s_mul_i32 s64, s64, {144*8192}")
    a("s_and_b32 s65, s31, 3"); a("s_lshl_b32 s65, s65, 7"); a("s_add_u32 s64, s64, s65")
    a("s_lshl_b32 s65, s30, 9"); a("s_add_u32 s64, s64, s65")
    a("s_lshl_b32 s65, s30, 24"); a(f"s_add_u32 s65, s65, {61440*256}")
    a("s_lshl_b32 s66, s31, 16"); a("s_add_u32 s65, s65, s66")
    if cfg.rot:
        a(f"s_mul_i32 s69, s2, {cfg.rot}"); a("s_lshr_b32 s70, s69, 4"); a("s_add_u32 s69, s69, s70"); a("s_and_b32 s69, s69, 15"); a("s_lshl_b32 s69, s69, 12")
    else:
        a("s_mov_b32 s69, 0")
    a(f"s_mov_b32 m0, {L_WQ}")
    a("s_mov_b32 s46, 4718592"); a("s_mov_b32 s47, 0x20000")
    a("s_waitcnt lgkmcnt(0)")
    a("s_mov_b32 s44, s10"); a("s_mov_b32 s45, s11")
    stamp(1)
    st = dict(W=cfg.W)
    def pub():
        a("v_add_u32 v20, 1, v20"); a("ds_write_b32 v21, v20")
    def issue(voff, soff, imm=0, wait=True):
        a(f"buffer_load_dwordx4 v{voff}, s[44:47], {soff} offen offset:{imm}{ntf} lds")
        if wait:
            a(f"s_waitcnt vmcnt({st['W']-1})"); pub()
    def loop_begin(n):
        L = a.label("Ll"); a(f"s_mov_b32 s67, {n}"); a(f"{L}:"); return L
    def loop_end(L):
        a("s_sub_u32 s67, s67, 1"); a("s_cbranch_scc0 " + L)
    loop_begin0 = loop_begin
    def loop_begin(n): return loop_begin0(n - 1)
    assert cfg.W - 1 >= 18
    L = loop_begin(6)
    for q in range(3):
        issue(10, "s64", wait=False)
        a("s_add_u32 m0, m0, 1024"); a(f"s_add_u32 s64, s64, {8*8192}")
    loop_end(L)
    stamp(6)
    a("s_barrier")
    stamp(7)
    def kv(ptr, lds, vo, nv, first=0):
        srd(44, ptr, 0x10000000)
        a(f"s_mov_b32 m0, {lds}"); a("s_mov_b32 s68, s69")
        def chunk(wait):
            a("s_add_u32 s66, s65, s68")
            for q in range(4): issue(vo + (q % nv), "s66", q*1024, wait=wait)
            a("s_add_u32 m0, m0, 4096"); a("s_add_u32 s68, s68, 4096"); a("s_and_b32 s68, s68, 0xffff")
        if first:
            Wst = st['W']
            for c in range(first): chunk(False)
            W0 = 18 + 4*first + 1
            a(f"v_mov_b32 v20, {18 + 4*first - (W0 - 1)}")
            for k in range(W0 - Wst):
                a(f"s_waitcnt vmcnt({W0 - 2 - k})"); pub()
        L = loop_begin(16 - first)
        chunk(True)
        loop_end(L)
    def kvphases():
        kv(6, L_K, 12, 4, first=(cfg.kfirst if 18 + 4*cfg.kfirst + 1 > st['W'] else 0))
        stamp(2)
        kv(8, L_V, 16, 2)
        stamp(3)
    def loader_body(Wa, WS0a, sfx):
        a("s_cmp_lt_u32 s29, 18"); a("s_cbranch_scc1 L_ldA" + sfx)
        a("s_cmp_lt_u32 s29, 27"); a("s_cbranch_scc1 L_ldS0" + sfx)
        a("L_ldA" + sfx + ":"); st["W"] = Wa; a(f"v_mov_b32 v20, {18-(Wa-1)}")
        kvphases()
        def lwait_flag(off, n):
            L = a.label("Lw")
            a(f"{L}:")
            a(f"ds_read_b32 v22, v4 offset:{off}")
            a("s_waitcnt lgkmcnt(0)")
            a("v_readfirstlane_b32 s51, v22")
            a(f"s_cmp_ge_i32 s51, {n}")
            a(f"s_cbranch_scc1 {L}d")
            spin_tail(L)
            a(f"{L}d:")
        def widen_issue(newW, emit_one):
            for k in range(newW - st['W']): emit_one(False)
            st['W'] = newW
        def drain():
            for k in range(st['W']-2, -1, -1):
                a(f"s_waitcnt vmcnt({k})"); pub()
        a("s_cmp_lt_u32 s29, 18"); a("s_cbranch_scc1 L_ldF" + sfx)
        st['W'] = Wa
        if cfg.zwo:
            lwait_flag(F_KFREE, 4)
            srd(44, 12, 4718592)
            a("s_sub_u32 s64, s29, 27")
            a(f"s_mul_i32 s60, s28, {512*1152}"); a(f"s_add_u32 s60, s60, {(64 - cfg.zwo)*8*1152}"); a("s_lshl_b32 s61, s64, 7"); a("s_add_u32 s60, s60, s61")
            a("s_add_u32 s61, s60, 640"); a("s_cmp_lt_u32 s64, 4"); a("s_cselect_b32 s61, s61, 0x40000000")
            a(f"s_mov_b32 m0, {L_K}")
            L = loop_begin(cfg.zwo)
            a("buffer_load_dwordx4 v11, s[44:47], s60 offen lds")
            a(f"s_waitcnt vmcnt({st['W']-1})"); pub()
            a("buffer_load_dwordx4 v11, s[44:47], s61 offen lds")
            a(f"s_waitcnt vmcnt({st['W']-1})"); pub()
            a(f"s_add_u32 s60, s60, {8*1152}"); a(f"s_add_u32 s61, s61, {8*1152}")
            loop_end(L)
        if cfg.zpf:
            lwait_flag(F_KFREE, 4)
            a("s_sub_u32 s64, s29, 27")
            a("s_bitcmp1_b32 s64, 0")
            a("s_cselect_b32 s44, s18, s16"); a("s_cselect_b32 s45, s19, s17"); a("s_mov_b32 s46, 5308416"); a("s_mov_b32 s47, 0x20000")
            a("s_lshr_b32 s56, s44, 7"); a("s_mul_i32 s57, s28, 9"); a("s_add_u32 s56, s56, s57")
            a("s_sub_u32 s56, 3, s56"); a("s_and_b32 s56, s56, 7")
            a("s_add_u32 s56, s56, s57"); a("s_lshl_b32 s60, s56, 7")
            a("s_lshr_b32 s58, s64, 1")
            a("s_cmp_eq_u32 s58, 2"); a("s_cbranch_scc1 L_zpf9" + sfx)
            a(f"s_mul_i32 s58, s58, {cfg.zpf*8*9216}"); a(f"s_add_u32 s60, s60, {(72 - 2*cfg.zpf)*8*9216}"); a("s_add_u32 s60, s60, s58")
            a(f"s_mov_b32 m0, {L_K}")
            L = loop_begin(cfg.zpf)
            a("buffer_load_dwordx4 v18, s[44:47], s60 offen lds")
            a(f"s_waitcnt vmcnt({st['W']-1})"); pub()
            a(f"s_add_u32 s60, s60, {8*9216}")
            loop_end(L)
            a("s_branch L_zpfe" + sfx)
            a("L_zpf9" + sfx + ":")
            a("s_sub_u32 s58, s56, s57"); a("s_cmp_eq_u32 s58, 0"); a("s_cbranch_scc0 L_zpfe" + sfx)
            a(f"s_add_u32 s60, s60, {8*128 + (72 - cfg.zpf)*8*9216}")
            a("s_mov_b32 s52, s18"); a("s_mov_b32 s53, s19"); a("s_mov_b32 s54, 5308416"); a("s_mov_b32 s55, 0x20000")
            a(f"s_mov_b32 m0, {L_K}")
            L = loop_begin(cfg.zpf)
            a("buffer_load_dwordx4 v18, s[44:47], s60 offen lds")
            a(f"s_waitcnt vmcnt({st['W']-1})"); pub()
            a("buffer_load_dwordx4 v18, s[52:55], s60 offen lds")
            a(f"s_waitcnt vmcnt({st['W']-1})"); pub()
            a(f"s_add_u32 s60, s60, {8*9216}")
            loop_end(L)
            a("L_zpfe" + sfx + ":")
        drain()
        a("s_branch L_ldEnd")
        a("L_ldS0" + sfx + ":")
        st['W'] = WS0a
        a(f"v_mov_b32 v20, {18-(WS0a-1)}")
        kvphases()
        lwait_flag(F_KFREE, 4)
        srd(44, 12, 4718592)
        a("s_sub_u32 s66, s29, 18"); a("s_lshl_b32 s66, s66, 7"); a(f"s_mul_i32 s68, s28, {512*1152}"); a("s_add_u32 s66, s66, s68")
        a(f"s_mov_b32 m0, {L_WQ}")
        a("v_lshrrev_b32 v2, 3, v1"); a("v_and_b32 v3, 7, v1"); a("v_bfe_u32 v8, v2, 1, 1"); a("v_lshlrev_b32 v8, 1, v8"); a("v_xor_b32 v3, v3, v8")
        a("v_lshlrev_b32 v3, 4, v3"); a("v_mul_u32_u24 v8, 1152, v2"); a("v_add_u32 v24, v8, v3"); a("v_xor_b32 v23, 64, v24")
        cnt = [0]
        def one_wo(wait):
            issue(23 if (cnt[0] >> 1) & 1 else 24, "s66", wait=wait); a("s_add_u32 m0, m0, 1024"); a(f"s_add_u32 s66, s66, {8*1152}")
            cnt[0] += 1
        ex = (cfg.WS - st['W'] + 3) // 4 * 4 if cfg.WS > st['W'] else 0
        widen_issue(st['W'] + ex, one_wo)
        L = loop_begin((64 - ex) // 4)
        for q in range(4): one_wo(True)
        loop_end(L)
        drain()
        a("s_branch L_ldEnd")
        a("L_ldF" + sfx + ":")
        st['W'] = Wa
        lwait_flag(F_KFREE, 4)
        srd(44, 16, 5308416)
        a("s_bitcmp1_b32 s29, 0"); a("s_cselect_b32 s44, s18, s16"); a("s_cselect_b32 s45, s19, s17")
        a("s_lshr_b32 s68, s29, 1"); a("s_mul_i32 s69, s28, 9"); a("s_add_u32 s68, s68, s69")
        a("s_lshl_b32 s66, s68, 7")
        a(f"s_mov_b32 m0, {L_WQ}")
        def one_m(wait):
            issue(18, "s66", wait=wait); a("s_add_u32 m0, m0, 1024"); a(f"s_add_u32 s66, s66, {8*9216}")
        if cfg.WF1 and cfg.WF1 < Wa:
            for k in range(Wa - cfg.WF1):
                a(f"s_waitcnt vmcnt({Wa - 2 - k})"); pub()
            st['W'] = cfg.WF1
            L = loop_begin(cfg.NF1); one_m(True); loop_end(L)
            done = cfg.NF1
        else:
            done = 0
        ex = cfg.WF - st['W']
        widen_issue(cfg.WF, one_m)
        L = loop_begin(72 - done - ex); one_m(True); loop_end(L)
        stamp(4)
        if cfg.WD and cfg.WD < st['W']:
            for k in range(st['W'] - cfg.WD):
                a(f"s_waitcnt vmcnt({st['W'] - 2 - k})"); pub()
            st['W'] = cfg.WD
        lwait_flag(F_VFREE, 4)
        srd(44, 20, 5308416)
        a("s_and_b32 s69, s29, 1"); a("s_lshl_b32 s69, s69, 3"); a("s_lshl_b32 s68, s68, 6"); a("s_add_u32 s68, s68, s69")
        a("s_mul_i32 s66, s68, 1152")
        a(f"s_mov_b32 m0, {L_V}")
        L = loop_begin(9)
        for o in range(4):
            a(f"s_add_u32 s68, s66, {o*16*1152}")
            issue(19 if (o & 1) else 11, "s68")
            a("s_add_u32 m0, m0, 1024")
        a("s_add_u32 s66, s66, 128")
        loop_end(L)
        drain()
        a("s_branch L_ldEnd")
    if cfg.Wlate:
        a("s_getreg_b32 s64, hwreg(HW_REG_XCC_ID, 0, 4)"); a("s_cmp_ge_u32 s64, 4"); a("s_cbranch_scc1 L_ldLate")
        loader_body(cfg.W, cfg.WS0, "e")
        a("L_ldLate:")
        loader_body(cfg.Wlate, cfg.WS0late, "l")
    else:
        loader_body(cfg.W, cfg.WS0, "")
    a("L_ldEnd:")
    stamp(5)
    a("s_branch L_fin")

    DPP = "row_mask:0xf bank_mask:0xf"
    J0 = lambda: (a("s_mov_b32 exec_lo, 0x00010001"), a("s_mov_b32 exec_hi, 0x00010001"))
    J01 = lambda: (a("s_mov_b32 exec_lo, 0x00030003"), a("s_mov_b32 exec_hi, 0x00030003"))
    FULL = lambda: a("s_mov_b64 exec, -1")
    def wait_prog_s(thr):
        L = a.label("Lw")
        a(f"s_cmp_ge_i32 s47, {thr}"); a(f"s_cbranch_scc1 {L}d")
        a(f"{L}:")
        if cfg.lsleep: a(f"s_sleep {cfg.lsleep}")
        a(f"ds_read_b32 v15, v4 offset:{O_PROG}"); a("s_waitcnt lgkmcnt(0)"); a("v_readfirstlane_b32 s47, v15")
        a(f"s_cmp_ge_i32 s47, {thr}"); a(f"s_cbranch_scc1 {L}d"); spin_tail(L); a(f"{L}d:")
    def red2(op, x, y, tx, ty):
        for s_ in (8, 4, 2, 1):
            a(f"{op}_dpp v{x}, v{x}, v{x} row_ror:{s_} {DPP}"); a(f"{op}_dpp v{y}, v{y}, v{y} row_ror:{s_} {DPP}")
        for sw in ("v_permlane16_swap_b32", "v_permlane32_swap_b32"):
            a(f"v_mov_b32 v{tx}, v{x}"); a(f"v_mov_b32 v{ty}, v{y}")
            a(f"{sw} v{x}, v{tx}"); a(f"{sw} v{y}, v{ty}")
            a(f"{op} v{x}, v{x}, v{tx}"); a(f"{op} v{y}, v{y}, v{ty}")
    def ln_final(mean, var, t):
        a(f"v_max_f32 v{var}, 0, v{var}")
        a(f"v_cvt_pk_bf16_f32 v{t}, v{var}, v{mean}")
        a(f"v_lshlrev_b32 v{var}, 16, v{t}"); a(f"v_and_b32 v{mean}, 0xffff0000, v{t}")
        a(f"v_add_f32 v{var}, 0x3727c5ac, v{var}"); rnd1(var, t)
        a(f"v_sqrt_f32 v{var}, v{var}"); rnd1(var, t); a(f"v_rcp_f32 v{var}, v{var}")

    def chk(grs, acc):
        a(f"v_xor_b32 v{acc}, v{grs[0]+3}, v6")
        for gq in grs[1:]: a(f"v_bitop3_b32 v{acc}, v{gq+3}, v6, v{acc} bitop3:0xbe")
        a(f"v_cmp_ne_u32 vcc, 0, v{acc}")
    def notice(i_sel, dreg, off):
        L = a.label("Ln")
        a(f"s_cmp_eq_u32 s29, {i_sel}"); a(f"s_cbranch_scc0 {L}")
        a("s_cmp_eq_u32 s49, 0"); a(f"s_cbranch_scc0 {L}")
        a("s_lshl_b32 s51, s28, 7"); a(f"s_add_u32 s51, s51, {W_H + off}")
        a("s_mov_b64 exec, 0xff")
        a(f"buffer_store_dwordx4 v[{dreg}:{dreg+3}], v38, s[32:35], s51 offen sc1")
        FULL()
        a(f"{L}:")
    def wait_notice(off, vt):
        L = a.label("Lh"); a(f"{L}:")
        if cfg.hsleep: a(f"s_sleep {cfg.hsleep}")
        a(f"buffer_load_dwordx4 v[{vt}:{vt+3}], v39, s[32:35], s59 offen sc1")
        a("s_waitcnt vmcnt(0)")
        a(f"v_cmp_ne_u32 vcc, v{vt+3}, v6"); a(f"s_cbranch_vccz {L}d")
        spin_tail(L)
        a(f"{L}d:")
    def lstore(txt, key):
        if key in cfg.force_local:
            a(txt); return
        if not cfg.use_local:
            a(txt + " sc1"); return
        L = a.label("Ls")
        a("s_cmp_eq_u32 s45, 1"); a(f"s_cbranch_scc1 {L}p")
        a(txt + " sc1"); a(f"s_branch {L}q")
        a(f"{L}p:"); a(txt); a(f"{L}q:")
    a("L_compute:")
    a("s_sub_u32 s49, s3, 1")
    a("s_mov_b32 s47, -1000")
    if cfg.debug: a("s_mov_b32 s46, 0")
    a("v_and_b32 v2, 15, v1"); a("v_lshrrev_b32 v3, 4, v1")
    a("v_mov_b32 v5, 1")
    a("s_mov_b32 s60, 0x07060501"); a("s_mov_b32 s61, 0x07060502"); a("s_mov_b32 s62, 0x07060503")
    a("s_mov_b32 s63, 0x04000c0c"); a("s_mov_b32 s64, 0x0706000c")
    a("v_lshlrev_b32 v14, 5, v1")
    a("v_min_u32 v15, 35, v1"); a("s_mul_i32 s51, s49, 36"); a("v_add_u32 v15, s51, v15"); a("v_lshlrev_b32 v18, 3, v15")
    a("s_mul_i32 s52, s28, 5"); a("s_add_u32 s52, s52, s29"); a("s_sub_u32 s52, s52, 27")
    a("s_lshl_b32 s53, s52, 5"); a("v_and_b32 v19, 3, v1"); a("v_lshl_add_u32 v19, v19, 3, s53")
    a("s_cmp_ge_u32 s29, 27"); a("s_cselect_b64 s[56:57], -1, 0")
    a("v_cndmask_b32 v18, v18, v19, s[56:57]")
    a("s_waitcnt lgkmcnt(0)")
    srd(36, 4, 1152)
    a("buffer_load_dwordx4 v[20:23], v14, s[36:39], 0 offen")
    a("buffer_load_dwordx4 v[24:27], v14, s[36:39], 0 offen offset:16")
    a("buffer_load_dwordx2 v[16:17], v18, s[36:39], 0 offen")
    a("s_load_dword s48, s[26:27], 0")
    a("s_mov_b32 s71, 0")
    if cfg.prefetch_code and not cfg.pf_top:
        a("s_cmp_eq_u32 s29, 31"); a("s_cbranch_scc0 L_nopf")
        a("s_cmp_eq_u32 s49, 3"); a("s_cbranch_scc0 L_nopf")
        a("s_mov_b32 s71, 1")
        a("s_getpc_b64 s[52:53]")
        a("s_and_b32 s52, s52, 0xffffff00")
        a("v_lshlrev_b32 v15, 4, v1")
        a("s_mov_b32 s51, CODE_KB")
        a("L_pfl:")
        a("global_load_dwordx4 v[252:255], v15, s[52:53]")
        a("v_add_u32 v15, 1024, v15")
        a("s_sub_u32 s51, s51, 1"); a("s_cmp_lg_u32 s51, 0"); a("s_cbranch_scc1 L_pfl")
        a("L_nopf:")
    a("s_barrier")
    if cfg.loader_only:
        arrive(F_KFREE); arrive(F_VFREE); a("s_branch L_fin")
    srd(32, 26, W_SIZE + (0x100000 if cfg.debug else 0)); srd(40, 22, 1152)
    a("v_lshrrev_b32 v28, 2, v2"); a("v_and_b32 v29, 3, v2")
    a("v_and_b32 v30, 1, v3"); a("v_lshrrev_b32 v31, 1, v3")
    a("v_lshl_add_u32 v32, v30, 2, v28")
    a("v_lshrrev_b32 v33, 1, v32")
    a("v_xor_b32 v33, s49, v33"); a("v_lshlrev_b32 v33, 5, v33")
    a("v_lshl_add_u32 v33, v29, 3, v33")
    a("v_lshl_add_u32 v33, v32, 7, v33")
    a("v_lshl_add_u32 v7, v31, 10, v33")
    a("v_lshl_add_u32 v33, v3, 2, v28")
    a("s_lshl_b32 s51, s49, 1"); a("v_xor_b32 v34, s51, v32"); a("v_lshlrev_b32 v34, 5, v34")
    a("v_lshl_add_u32 v34, v29, 3, v34"); a("v_lshl_add_u32 v34, v33, 8, v34")
    a(f"v_add_u32 v8, {L_V}, v34"); a("v_xor_b32 v34, 32, v34"); a(f"v_add_u32 v9, {L_V}, v34")
    a("v_xor_b32 v33, v3, v2"); a("v_lshlrev_b32 v33, 4, v33"); a("v_lshl_add_u32 v33, v2, 8, v33")
    a("s_lshl_b32 s51, s49, 14"); a(f"s_add_u32 s51, s51, {L_K}")
    for c in range(4):
        if c: a(f"v_xor_b32 v34, {64*c}, v33"); a(f"v_add_u32 v{10+c}, s51, v34")
        else: a("v_add_u32 v10, s51, v33")
    a(f"v_add_u32 v50, {O_LN1}, v14"); a("v_add_u32 v50, v50, v4")
    a("s_lshr_b32 s51, s31, 2"); a("s_mul_i32 s51, s51, 288"); a(f"s_add_u32 s51, s51, {L_SCR+O_LN1}")
    a("v_lshl_add_u32 v51, v3, 3, s51")
    a("v_and_b32 v33, 1, v2")
    a("v_lshlrev_b32 v34, 8, v33"); a("v_lshl_add_u32 v34, v3, 4, v34"); a("v_add_u32 v52, v34, v4")
    a("v_lshl_add_u32 v53, v33, 4, v4"); a("s_lshl_b32 s51, s49, 2"); a("v_add_u32 v54, s51, v53")
    a("v_lshl_add_u32 v55, v3, 5, v53"); a("s_lshl_b32 s51, s49, 8"); a("v_add_u32 v56, s51, v55")
    a("s_lshl_b32 s65, s30, 2"); a("s_lshr_b32 s52, s31, 2"); a("s_add_u32 s65, s65, s52"); a("s_lshl_b32 s65, s65, 10")
    a("s_and_b32 s52, s31, 3"); a("s_lshl_b32 s52, s52, 8"); a("s_add_u32 s65, s65, s52")
    a("s_lshl_b32 s52, s49, 6"); a("s_add_u32 s65, s65, s52"); a(f"s_add_u32 s65, s65, {W_A}")
    a("v_lshlrev_b32 v57, 4, v3")
    a("s_lshl_b32 s66, s30, 14"); a("s_lshl_b32 s52, s31, 9"); a("s_add_u32 s66, s66, s52")
    a("s_lshl_b32 s52, s49, 7"); a("s_add_u32 s66, s66, s52"); a(f"s_add_u32 s66, s66, {W_B}")
    a("v_and_b32 v58, 1, v2"); a("v_lshlrev_b32 v58, 13, v58"); a("v_bfe_u32 v33, v2, 1, 1"); a("v_lshl_add_u32 v58, v33, 6, v58"); a("v_lshl_add_u32 v58, v3, 4, v58")
    a("s_lshl_b32 s67, s30, 12"); a("s_lshl_b32 s52, s31, 7"); a("s_add_u32 s67, s67, s52"); a(f"s_add_u32 s67, s67, {W_ML}")
    a("v_and_b32 v59, 1, v2"); a("v_lshlrev_b32 v59, 11, v59"); a("v_lshrrev_b32 v33, 1, v2"); a("v_lshl_add_u32 v59, v33, 4, v59")
    a("s_lshl_b32 s68, s30, 12"); a(f"s_add_u32 s68, s68, {W_A}")
    a("s_lshl_b32 s69, s49, 4"); a("s_add_u32 s69, s69, 34")
    a("v_mov_b32 v44, 0"); a("v_mov_b32 v45, 0")
    a("s_waitcnt lgkmcnt(0)")
    a(f"s_add_u32 s48, s48, {TAG_INC}")
    a("v_mov_b32 v6, s48")
    if cfg.use_local:
        a("s_getreg_b32 s44, hwreg(HW_REG_XCC_ID, 0, 4)")
        a("s_lshl_b32 s51, s28, 12"); a(f"s_add_u32 s70, s51, {W_X}")
        a("v_and_b32 v232, 31, v1"); a("v_lshlrev_b32 v232, 7, v232"); a("v_mov_b32 v89, 0")
        a("s_cmp_eq_u32 s49, 2"); a("s_cbranch_scc0 L_nox")
        a("s_lshl_b32 s51, s29, 7"); a("s_add_u32 s51, s51, s70")
        a("v_mov_b32 v60, s44"); a("v_mov_b32 v61, 0"); a("v_mov_b32 v62, 0"); a("v_mov_b32 v63, v6")
        a("s_mov_b64 exec, 1")
        a("buffer_store_dwordx4 v[60:63], v89, s[32:35], s51 offen sc1")
        FULL()
        a("s_waitcnt vmcnt(1)"); a("s_branch L_xw1")
        a("L_nox:")
    a("s_cmp_eq_u32 s71, 0"); a("s_cbranch_scc1 L_xw0")
    a("s_waitcnt vmcnt(CODE_KB)"); a("s_branch L_xw1")
    a("L_xw0:"); a("s_waitcnt vmcnt(0)"); a("L_xw1:")
    stamp(1)
    if cfg.pretouch:
        a("s_cmp_eq_u32 s49, 1"); a("s_cbranch_scc0 L_nopt")
        a("v_lshlrev_b32 v33, 6, v1")
        a("buffer_load_dword v244, v33, s[32:35], s68 offen sc1")
        a("L_nopt:")
    a("v_lshlrev_b32 v28, 16, v20")
    a("v_and_b32 v29, 0xffff0000, v20")
    a("v_readfirstlane_b32 s52, v28")
    for k in range(1, 8):
        a(f"v_lshlrev_b32 v{28+2*k}, 16, v{20+k}"); a(f"v_and_b32 v{29+2*k}, 0xffff0000, v{20+k}")
    a("s_mov_b32 exec_hi, 15")
    for k in range(8): a(f"v_pk_add_f32 v[{64+2*k}:{65+2*k}], v[{28+2*k}:{29+2*k}], s[52:53] op_sel_hi:[1,0] neg_lo:[0,1] neg_hi:[0,1]")
    a("v_pk_mul_f32 v[46:47], v[64:65], v[64:65]")
    for k in range(1, 8): a(f"v_pk_fma_f32 v[46:47], v[{64+2*k}:{65+2*k}], v[{64+2*k}:{65+2*k}], v[46:47]")
    for k in range(4): a(f"v_pk_add_f32 v[{64+2*k}:{65+2*k}], v[{64+2*k}:{65+2*k}], v[{72+2*k}:{73+2*k}]")
    a("v_pk_add_f32 v[64:65], v[64:65], v[66:67]"); a("v_pk_add_f32 v[68:69], v[68:69], v[70:71]"); a("v_pk_add_f32 v[64:65], v[64:65], v[68:69]")
    a("v_add_f32 v44, v64, v65"); a("v_add_f32 v45, v46, v47")
    FULL()
    red2("v_add_f32", 44, 45, 46, 47)
    a("v_mul_f32 v44, 0x3ae38e39, v44"); a("v_mul_f32 v45, 0x3ae38e39, v45")
    a("v_fma_f32 v45, -v44, v44, v45"); a("v_add_f32 v44, s52, v44")
    ln_final(44, 45, 46)
    for k in range(8): a(f"v_pk_add_f32 v[{28+2*k}:{29+2*k}], v[{28+2*k}:{29+2*k}], v[44:45] op_sel_hi:[1,0] neg_lo:[0,1] neg_hi:[0,1]")
    for k in range(8): a(f"v_cvt_pk_bf16_f32 v{20+k}, v{28+2*k}, v{29+2*k}")
    for k in range(8):
        a(f"v_lshlrev_b32 v{28+2*k}, 16, v{20+k}"); a(f"v_and_b32 v{29+2*k}, 0xffff0000, v{20+k}")
    for k in range(8): a(f"v_pk_mul_f32 v[{28+2*k}:{29+2*k}], v[{28+2*k}:{29+2*k}], v[44:45] op_sel:[0,1] op_sel_hi:[1,1]")
    for k in range(8): a(f"v_cvt_pk_bf16_f32 v{20+k}, v{28+2*k}, v{29+2*k}")
    a("s_mov_b32 exec_hi, 15")
    a("ds_write_b128 v50, v[20:23]"); a("ds_write_b128 v50, v[24:27] offset:16")
    FULL()
    stamp(2)
    for r in range(4): a(f"v_mov_b32 v{60+r}, 0")
    wait_prog_s(18)
    for t in range(9):
        a(f"ds_read_b64 v[{20+2*t}:{21+2*t}], v51 offset:{32*t}")
        a(f"ds_read_b64_tr_b16 v[{64+2*t}:{65+2*t}], v7 offset:{L_WQ + 2048*t}")
    for t in range(9):
        if t in (0, 3, 6): a(f"s_waitcnt lgkmcnt({min(15, 2*(6-t))})")
        a(f"v_mfma_f32_16x16x16_bf16 v[60:63], v[{64+2*t}:{65+2*t}], v[{20+2*t}:{21+2*t}], v[60:63]")
    pack_gran(224, 60)
    J0()
    QST = "buffer_store_dwordx4 v[224:227], v57, s[32:35], s65 offen"
    if not cfg.nopub: a(QST if (cfg.use_local or "A" in cfg.force_local) else QST + " sc1")
    FULL()
    a("s_mov_b32 s45, 0")
    if cfg.use_local:
        a("s_cmp_eq_u32 s49, 2"); a("s_cbranch_scc0 L_nox2")
        a("buffer_load_dwordx4 v[228:231], v232, s[32:35], s70 offen sc1")
        a("L_nox2:")
    def restore_q():
        J0(); a(QST + " sc1"); FULL()
    def loc_check(vreg):
        L = a.label("Lc")
        a(f"v_readfirstlane_b32 s52, v{vreg}")
        a("s_cmp_lg_u32 s45, 0"); a(f"s_cbranch_scc1 {L}")
        a("s_mov_b32 s45, s52")
        a("s_cmp_eq_u32 s52, 2"); a(f"s_cbranch_scc0 {L}")
        restore_q()
        a(f"{L}:")
    stamp(3)
    wait_prog_s("s69")
    for t in range(4):
        for c in range(4):
            a(f"ds_read_b128 v[{64+16*t+4*c}:{67+16*t+4*c}], v{10+c} offset:{4096*t}")
    a("s_waitcnt lgkmcnt(0)")
    arrive(F_KFREE)
    if cfg.use_local:
        a("s_cmp_eq_u32 s49, 2"); a("s_cbranch_scc0 L_nox3")
        L = a.label("Lx"); a(f"{L}:")
        a("s_waitcnt vmcnt(0)")
        a("v_cmp_ne_u32 vcc, v231, v6"); a(f"s_cbranch_vccz {L}d")
        a("buffer_load_dwordx4 v[228:231], v232, s[32:35], s70 offen sc1")
        spin_tail(L)
        a(f"{L}d:")
        a("v_cmp_ne_u32 vcc, s44, v228"); a("v_cmp_ne_u32 s[56:57], v231, v6"); a("s_or_b64 vcc, vcc, s[56:57]")
        a("s_cmp_eq_u64 vcc, 0"); a("s_cselect_b32 s51, 1, 2")
        a("v_mov_b32 v228, s51")
        a("s_mov_b64 exec, 1")
        a(f"ds_write_b32 v4, v228 offset:{F_LOC}")
        FULL()
        a("L_nox3:")
    a("s_cmp_eq_u32 s49, 0"); a("s_cbranch_scc0 L_noq")
    a("v_lshlrev_b32 v14, 4, v1"); a("v_lshlrev_b32 v19, 3, v1"); a("v_add_u32 v19, v19, v4")
    L = a.label("Lg"); a(f"{L}:")
    if cfg.qsleep: a(f"s_sleep {cfg.qsleep}")
    if not cfg.nogather:
        for kp in range(4): a(f"buffer_load_dwordx4 v[{20+4*kp}:{23+4*kp}], v14, s[32:35], s68 offen offset:{1024*kp} sc1")
    if cfg.use_local: a(f"ds_read_b32 v37, v4 offset:{F_LOC}")
    a("s_waitcnt vmcnt(0) lgkmcnt(0)")
    if not cfg.noqcheck:
        chk([20, 24, 28, 32], 36)
        a(f"s_cbranch_vccz {L}d")
        if cfg.use_local: loc_check(37)
        spin_tail(L)
        a(f"{L}d:")
    for kp in range(4): unpack_b(40+kp, 20+4*kp)
    a("v_pk_add_f32 v[20:21], v[20:21], v[24:25]"); a("v_pk_add_f32 v[28:29], v[28:29], v[32:33]"); a("v_pk_add_f32 v[20:21], v[20:21], v[28:29]")
    a("v_pk_add_f32 v[40:41], v[40:41], v[42:43]"); a("v_add_f32 v40, v40, v41")
    a("v_add_f32 v22, v22, v26"); a("v_add_f32 v30, v30, v34"); a("v_add_f32 v22, v22, v30")
    a("v_cvt_pk_bf16_f32 v48, v20, v40"); a("v_cvt_pk_bf16_f32 v49, v21, v22")
    a(f"ds_write_b64 v19, v[48:49] offset:{O_Q}")
    arrive(F_QRDY)
    a("L_noq:")
    if cfg.use_local:
        L = a.label("Lq"); a(f"{L}:")
        a(f"ds_read_b64 v[36:37], v4 offset:{F_QRDY}"); a("s_waitcnt lgkmcnt(0)")
        loc_check(37)
        a("v_readfirstlane_b32 s51, v36"); a("s_cmp_ge_i32 s51, 1"); a(f"s_cbranch_scc1 {L}d")
        spin_tail(L)
        a(f"{L}d:")
    for r in range(16): a(f"v_mov_b32 v{144+r}, 0")
    if not cfg.use_local: wait_flag(F_QRDY, 1)
    stamp(4)
    for c in range(4): a(f"ds_read_b128 v[{128+4*c}:{131+4*c}], v52 offset:{O_Q + 64*c}")
    a(f"s_mov_b32 s52, {SCALE:#x}"); a(f"s_mov_b32 s54, {LOG2E:#x}")
    for c in range(4):
        a(f"s_waitcnt lgkmcnt({3-c})")
        for t in range(4):
            a(f"v_mfma_f32_16x16x32_bf16 v[{144+4*t}:{147+4*t}], v[{64+16*t+4*c}:{67+16*t+4*c}], v[{128+4*c}:{131+4*c}], v[{144+4*t}:{147+4*t}]")
    for k in range(8): a(f"v_cvt_pk_bf16_f32 v{20+k}, v{144+2*k}, v{145+2*k}")
    for k in range(8):
        a(f"v_lshlrev_b32 v{144+2*k}, 16, v{20+k}"); a(f"v_and_b32 v{145+2*k}, 0xffff0000, v{20+k}")
    for k in range(8): a(f"v_pk_mul_f32 v[{144+2*k}:{145+2*k}], v[{144+2*k}:{145+2*k}], s[52:53] op_sel_hi:[1,0]")
    for k in range(8): a(f"v_cvt_pk_bf16_f32 v{20+k}, v{144+2*k}, v{145+2*k}")
    for k in range(8):
        a(f"v_lshlrev_b32 v{144+2*k}, 16, v{20+k}"); a(f"v_and_b32 v{145+2*k}, 0xffff0000, v{20+k}")
    a("v_max3_f32 v20, v144, v145, v146")
    for k in range(147, 159, 2): a(f"v_max3_f32 v20, v20, v{k}, v{k+1}")
    a("v_max_f32 v20, v20, v159")
    xrow_red("v_max_f32", 20, 21)
    a("s_mov_b64 exec, 3")
    a(f"ds_write_b32 v54, v20 offset:{O_MX}")
    a("s_mov_b64 exec, 1")
    a(f"ds_add_u32 v4, v5 offset:{F_MAXR}")
    FULL()
    wait_flag(F_MAXR, 4)
    a(f"ds_read_b128 v[24:27], v53 offset:{O_MX}")
    a("s_waitcnt lgkmcnt(0)")
    a("v_max3_f32 v23, v24, v25, v26"); a("v_max_f32 v22, v23, v27"); a("v_max_f32 v23, v23, v27")
    for k in range(8): a(f"v_pk_add_f32 v[{144+2*k}:{145+2*k}], v[{144+2*k}:{145+2*k}], v[22:23] neg_lo:[0,1] neg_hi:[0,1]")
    for k in range(8): a(f"v_pk_mul_f32 v[{144+2*k}:{145+2*k}], v[{144+2*k}:{145+2*k}], s[54:55] op_sel_hi:[1,0]")
    for k in range(16): a(f"v_exp_f32 v{144+k}, v{144+k}")
    for k in range(8): a(f"v_cvt_pk_bf16_f32 v{24+k}, v{144+2*k}, v{145+2*k}")
    J01()
    a(f"ds_write_b128 v56, v[24:27] offset:{O_P}"); a(f"ds_write_b128 v56, v[28:31] offset:{O_P+128}")
    FULL()
    for k in range(4): a(f"v_pk_add_f32 v[{144+2*k}:{145+2*k}], v[{144+2*k}:{145+2*k}], v[{152+2*k}:{153+2*k}]")
    a("v_pk_add_f32 v[144:145], v[144:145], v[146:147]"); a("v_pk_add_f32 v[148:149], v[148:149], v[150:151]"); a("v_pk_add_f32 v[144:145], v[144:145], v[148:149]")
    a("v_add_f32 v20, v144, v145")
    xrow_red("v_add_f32", 20, 21)
    a("s_mov_b64 exec, 3")
    a(f"ds_write_b32 v54, v20 offset:{O_LS}")
    a("s_mov_b64 exec, 1")
    a(f"ds_add_u32 v4, v5 offset:{F_PRDY}")
    FULL()
    for r in range(8): a(f"v_mov_b32 v{112+r}, 0")
    wait_flag(F_PRDY, 4)
    stamp(5)
    if cfg.use_local:
        L = a.label("Lq"); a(f"{L}:")
        a("s_cmp_lg_u32 s45, 0"); a(f"s_cbranch_scc1 {L}d")
        a(f"ds_read_b32 v37, v4 offset:{F_LOC}"); a("s_waitcnt lgkmcnt(0)")
        loc_check(37)
        spin_tail(L)
        a(f"{L}d:")
    for u in range(8): a(f"ds_read_b128 v[{64+4*u}:{67+4*u}], v55 offset:{O_P + 128*u}")
    a(f"ds_read_b128 v[24:27], v53 offset:{O_LS}")
    a("v_mov_b32 v123, v6"); a("v_mov_b32 v30, 0"); a("v_mov_b32 v31, v6"); a("v_mov_b32 v28, v23")
    a("s_waitcnt lgkmcnt(0)")
    a("v_pk_add_f32 v[24:25], v[24:25], v[26:27]"); a("v_add_f32 v29, v24, v25")
    for grp in ([] if cfg.nopv else cfg.pvgroups):
        wait_prog_s(82 + 8*(grp[-1]+1))
        for u in grp:
            fb = 160 + 8*u
            a(f"ds_read_b64_tr_b16 v[{fb}:{fb+1}], v8 offset:{8192*u}")
            a(f"ds_read_b64_tr_b16 v[{fb+2}:{fb+3}], v8 offset:{8192*u+4096}")
            a(f"ds_read_b64_tr_b16 v[{fb+4}:{fb+5}], v9 offset:{8192*u}")
            a(f"ds_read_b64_tr_b16 v[{fb+6}:{fb+7}], v9 offset:{8192*u+4096}")
        n = 4*len(grp)
        for k, u in enumerate(grp):
            fb = 160 + 8*u
            a(f"s_waitcnt lgkmcnt({min(15, n - 4*k - 2)})")
            a(f"v_mfma_f32_16x16x32_bf16 v[112:115], v[{fb}:{fb+3}], v[{64+4*u}:{67+4*u}], v[112:115]")
            a(f"s_waitcnt lgkmcnt({min(15, n - 4*k - 4)})")
            a(f"v_mfma_f32_16x16x32_bf16 v[116:119], v[{fb+4}:{fb+7}], v[{64+4*u}:{67+4*u}], v[116:119]")
    a("s_mov_b32 s52, 0xcccccccc"); a("s_mov_b32 s53, 0xcccccccc")
    for r in range(4): a(f"v_cndmask_b32 v{112+r}, v{112+r}, v{116+r}, s[52:53]")
    a("s_mov_b32 exec_lo, 0x000f000f"); a("s_mov_b32 exec_hi, 0x000f000f")
    a("v_perm_b32 v120, v112, v113, s60"); a("v_perm_b32 v121, v114, v113, s61"); a("v_perm_b32 v122, v115, v113, s62")
    if not cfg.nopub2: lstore("buffer_store_dwordx4 v[120:123], v58, s[32:35], s66 offen", "B")
    a("s_cmp_eq_u32 s49, 0"); a("s_cbranch_scc0 L_noml")
    a("s_mov_b64 exec, 0xffff")
    if not cfg.nopub2: lstore("buffer_store_dwordx4 v[28:31], v59, s[32:35], s67 offen", "B")
    a("L_noml:")
    FULL()
    arrive(F_VFREE)
    stamp(6)
    if cfg.ackstamp:
        a("s_waitcnt vmcnt(0)"); stamp(2)
    if cfg.stop_after == "attn": a("s_branch L_fin")
    a("s_cmp_lt_u32 s29, 18"); a("s_cbranch_scc1 L_F")
    a("s_cmp_lt_u32 s29, 27"); a("s_cbranch_scc1 L_S")

    a("s_cmp_eq_u32 s49, 0"); a("s_cbranch_scc0 L_fin")
    a("s_mul_i32 s65, s28, 5"); a("s_add_u32 s65, s65, s29"); a("s_sub_u32 s65, s65, 27")
    a("s_cmp_lt_u32 s65, 36"); a("s_cbranch_scc0 L_fin")
    a("v_bfe_u32 v14, v1, 2, 3"); a("v_mul_u32_u24 v14, 2304, v14"); a("v_and_b32 v15, 3, v1"); a("v_lshl_add_u32 v14, v15, 4, v14")
    a("s_lshl_b32 s66, s65, 6"); a(f"s_add_u32 s66, s66, {W_C}")
    L = a.label("Lg"); a(f"{L}:")
    a("s_sleep 4")
    a("buffer_load_dwordx4 v[20:23], v14, s[32:35], s66 offen sc1")
    a("s_waitcnt vmcnt(0)")
    tagcheck([20], 36, L)
    unpack_b(24, 20)
    a("v_mov_b32 v25, v21"); a("v_mov_b32 v26, v22"); a("v_mov_b32 v23, v20")
    for s_ in (4, 8):
        for r in range(4): a(f"v_add_f32_dpp v{23+r}, v{23+r}, v{23+r} row_ror:{s_} {DPP}")
    for r in range(4): a(f"v_mov_b32 v{40+r}, v{23+r}")
    for r in range(4): a(f"v_permlane16_swap_b32 v{23+r}, v{40+r}")
    for r in range(4): a(f"v_add_f32 v{23+r}, v{23+r}, v{40+r}")
    rnd2(23, 24, 36); rnd2(25, 26, 36)
    a("v_lshlrev_b32 v28, 16, v16"); a("v_and_b32 v29, 0xffff0000, v16"); a("v_lshlrev_b32 v30, 16, v17"); a("v_and_b32 v31, 0xffff0000, v17")
    for r in range(4): a(f"v_add_f32 v{28+r}, v{28+r}, v{23+r}")
    rnd2(28, 29, 36); rnd2(30, 31, 36)
    stamp(7)
    a("v_lshlrev_b32 v14, 4, v1")
    a("s_mul_i32 s66, s65, 9216"); a(f"s_add_u32 s66, s66, {W_D}"); a("s_add_u32 s67, s66, 4096"); a("s_add_u32 s68, s66, 8192")
    a("s_lshl_b32 s69, s65, 5"); a("v_and_b32 v19, 3, v1"); a("v_lshlrev_b32 v19, 3, v19"); a("v_mov_b32 v18, 0")
    if cfg.hintD:
        a("v_and_b32 v39, 7, v1"); a("v_lshlrev_b32 v39, 7, v39"); a(f"s_mov_b32 s59, {W_H + 0x400}")
        wait_notice(0x400, 240)
    def rolling(nsets, nloads, emit, check, tail, pre=None, between=None):
        L = a.label("Lr")
        for k in range(nsets):
            emit(k)
            if k == 0 and between: between()
        a(f"{L}:")
        for k in range(nsets):
            if cfg.debug: a("s_add_u32 s46, s46, 1")
            if pre: pre(k)
            a(f"s_waitcnt vmcnt({(nsets-1)*nloads})")
            check(k)
            a(f"s_cbranch_vccz {L}s{k}")
            emit(k)
        spin_tail(L)
        for k in range(nsets):
            a(f"{L}s{k}:")
            tail(k)
            if k < nsets - 1: a(f"s_branch {L}j")
        a(f"{L}j:")
    ZS = [64, 100, 136][:cfg.zsets]
    def z_emit(k):
        for i9 in range(9):
            q = ZS[k] + 4*i9
            a(f"buffer_load_dwordx4 v[{q}:{q+3}], v14, s[32:35], s{66+i9//4} offen offset:{1024*(i9%4)} sc1")
    def z_tail(k):
        b = ZS[k]
        stamp(8)
        for q in range(9): unpack_b(40+q, b+4*q)
        for q in range(1, 9): a(f"v_pk_add_f32 v[{b}:{b+1}], v[{b}:{b+1}], v[{b+4*q}:{b+4*q+1}]")
        for q in range(3): a(f"v_pk_add_f32 v[40:41], v[40:41], v[{42+2*q}:{43+2*q}]")
        a("v_add_f32 v33, v40, v41"); a("v_add_f32 v33, v33, v48")
        a(f"v_add_f32 v35, v{b+2}, v{b+6}")
        for q in range(2, 9): a(f"v_add_f32 v35, v35, v{b+2+4*q}")
        a(f"v_mov_b32 v32, v{b}"); a(f"v_mov_b32 v34, v{b+1}")
    rolling(len(ZS), 9, z_emit, lambda k: chk([ZS[k]+4*q for q in range(9)], 36), z_tail)
    for s_ in (4, 8):
        for r in range(4): a(f"v_add_f32_dpp v{32+r}, v{32+r}, v{32+r} row_ror:{s_} {DPP}")
    for sw in ("v_permlane16_swap_b32", "v_permlane32_swap_b32"):
        for r in range(4): a(f"v_mov_b32 v{40+r}, v{32+r}")
        for r in range(4): a(f"{sw} v{32+r}, v{40+r}")
        for r in range(0, 4, 2): a(f"v_pk_add_f32 v[{32+r}:{33+r}], v[{32+r}:{33+r}], v[{40+r}:{41+r}]")
    rnd2(32, 33, 36); rnd2(34, 35, 37)
    a("v_pk_add_f32 v[32:33], v[32:33], v[28:29]"); a("v_pk_add_f32 v[34:35], v[34:35], v[30:31]")
    a("v_cvt_pk_bf16_f32 v36, v32, v33"); a("v_cvt_pk_bf16_f32 v37, v34, v35")
    a("s_mov_b64 exec, 15")
    a("buffer_store_dwordx2 v[36:37], v19, s[40:43], s69 offen")
    a("s_cmp_eq_u32 s65, 0"); a("s_cbranch_scc0 L_noep")
    a("s_mov_b64 exec, 1")
    a(f"buffer_store_dword v6, v18, s[32:35], 0 offen offset:{W_EPOCH} sc1")
    a("L_noep:")
    FULL()
    stamp(9)
    a("s_branch L_fin")

    a("L_S:")
    a("v_lshrrev_b32 v32, 2, v2"); a("v_and_b32 v33, 3, v2")
    a("v_lshrrev_b32 v34, 1, v32"); a("v_and_b32 v35, 1, v3"); a("v_lshl_or_b32 v34, v35, 1, v34")
    a("v_lshlrev_b32 v34, 5, v34"); a("v_lshl_add_u32 v34, v33, 3, v34"); a("v_lshl_add_u32 v34, v32, 7, v34"); a("v_lshl_add_u32 v34, v3, 11, v34")
    a("s_lshl_b32 s51, s49, 14"); a("v_add_u32 v28, s51, v34")
    for T in range(1, 4): a(f"v_xor_b32 v{28+T}, {32*T}, v28")
    a("s_lshl_b32 s65, s28, 2"); a("s_add_u32 s65, s65, s49")
    a("s_lshl_b32 s66, s65, 13"); a(f"s_add_u32 s66, s66, {W_B}")
    a("s_lshl_b32 s68, s65, 11"); a(f"s_add_u32 s68, s68, {W_ML}")
    a("v_bfe_u32 v14, v1, 2, 2"); a("v_lshlrev_b32 v14, 11, v14"); a("v_lshl_add_u32 v14, v3, 6, v14"); a("v_and_b32 v35, 3, v1"); a("v_lshl_add_u32 v14, v35, 4, v14")
    a("v_lshlrev_b32 v41, 7, v2")
    a("v_lshlrev_b32 v18, 4, v2")
    a("s_lshl_b32 s51, s49, 8"); a("v_lshl_add_u32 v19, v3, 4, s51"); a("v_add_u32 v19, v19, v4")
    a("v_add_u32 v40, v18, v4")
    a("s_mul_i32 s69, s28, 2304"); a("s_sub_u32 s52, s29, 18"); a("s_lshl_b32 s52, s52, 8"); a("s_add_u32 s69, s69, s52"); a(f"s_add_u32 s69, s69, {W_C}")
    a(f"s_mov_b32 s54, {LOG2E:#x}")
    for r in range(16): a(f"v_mov_b32 v{192+r}, 0")
    a("v_mov_b32 v211, v6"); a("v_lshlrev_b32 v38, 4, v1")
    wait_prog_s(210)
    for T in range(4):
        for ks in range(4):
            b = 64 + 16*T + 4*ks
            off = L_WQ + 8192*(ks >> 1) + 1024*(ks & 1)
            a(f"ds_read_b64_tr_b16 v[{b}:{b+1}], v{28+T} offset:{off}")
            a(f"ds_read_b64_tr_b16 v[{b+2}:{b+3}], v{28+T} offset:{off + 512}")
    stamp(7)
    SS = [128, 212][:cfg.ssets]
    def s_emit(k):
        b0 = SS[k]
        a(f"buffer_load_dwordx4 v[{b0}:{b0+3}], v41, s[32:35], s68 offen sc1")
        for b in range(2):
            for i4 in range(4):
                q = b0 + 4 + 16*b + 4*i4
                a(f"buffer_load_dwordx4 v[{q}:{q+3}], v14, s[32:35], s66 offen offset:{512*i4 + 256*b} sc1")
    def s_pre(k):
        b0 = SS[k]
        a(f"s_waitcnt vmcnt({(len(SS)-1)*9 + 8})")
        a(f"v_mov_b32 v32, v{b0}")
        row_red("v_max_f32", 32)
        a(f"v_sub_f32 v33, v{b0}, v32"); a("v_mul_f32 v33, s54, v33"); a("v_exp_f32 v33, v33")
        a(f"v_mul_f32 v34, v33, v{b0+1}")
        row_red("v_add_f32", 34)
        a("v_rcp_f32 v34, v34"); a("v_mul_f32 v33, v33, v34")
    def s_tail(k):
        b0 = SS[k]
        stamp(8)
        if cfg.hintC: notice(18, 208, 0)
        for q in range(8): unpack_b(164+q, b0+4+4*q)
        for i4 in range(4):
            for b in range(2):
                q = b0 + 4 + 16*b + 4*i4
                srcs = [q, 164+4*b+i4, q+1, q+2]
                for r in range(4):
                    op = "v_mul_f32_dpp" if i4 == 0 else "v_fmac_f32_dpp"
                    a(f"{op} v{172+4*b+r}, v33, v{srcs[r]} quad_perm:[{i4},{i4},{i4},{i4}] {DPP}")
    rolling(len(SS), 9, s_emit, lambda k: chk([SS[k]] + [SS[k]+4+4*q for q in range(8)], 32), s_tail, s_pre)
    for s_ in (4, 8):
        for r in range(8): a(f"v_add_f32_dpp v{172+r}, v{172+r}, v{172+r} row_ror:{s_} {DPP}")
    for b in range(2):
        a(f"v_cvt_pk_bf16_f32 v{180+2*b}, v{172+4*b}, v{173+4*b}"); a(f"v_cvt_pk_bf16_f32 v{181+2*b}, v{174+4*b}, v{175+4*b}")
    a("s_waitcnt lgkmcnt(0)")
    BR = [184, 188, 164, 168]
    def bc(ks):
        b, v = ks >> 1, ks & 1
        o = []
        for hh in range(2):
            o.append(f"v_mov_b32_dpp v{BR[ks]+2*hh}, v{180+2*b} row_newbcast:{2*v+hh} {DPP}")
            o.append(f"v_mov_b32_dpp v{BR[ks]+2*hh+1}, v{181+2*b} row_newbcast:{2*v+hh} {DPP}")
        return o
    for x in bc(0): a(x)
    for ks in range(4):
        nxt = bc(ks+1) if ks < 3 else []
        for T in range(4):
            A_ = 64 + 16*T + 4*ks
            a(f"v_mfma_f32_16x16x32_bf16 v[{192+4*T}:{195+4*T}], v[{A_}:{A_+3}], v[{BR[ks]}:{BR[ks]+3}], v[{192+4*T}:{195+4*T}]")
            if nxt: a(nxt[T])
    J0()
    for T in range(4): a(f"ds_write_b128 v19, v[{192+4*T}:{195+4*T}] offset:{O_RED + 64*T}")
    a("s_waitcnt lgkmcnt(0)")
    FULL()
    a("s_barrier")
    a("s_cmp_eq_u32 s49, 0"); a("s_cbranch_scc0 L_fin")
    for w in range(4): a(f"ds_read_b128 v[{64+4*w}:{67+4*w}], v40 offset:{O_RED + 256*w}")
    a("s_waitcnt lgkmcnt(0)")
    a("v_pk_add_f32 v[64:65], v[64:65], v[68:69]"); a("v_pk_add_f32 v[72:73], v[72:73], v[76:77]")
    a("v_pk_add_f32 v[66:67], v[66:67], v[70:71]"); a("v_pk_add_f32 v[74:75], v[74:75], v[78:79]")
    a("v_pk_add_f32 v[64:65], v[64:65], v[72:73]"); a("v_pk_add_f32 v[66:67], v[66:67], v[74:75]")
    a("s_mov_b64 exec, 0xffff")
    a("v_perm_b32 v208, v64, v65, s60"); a("v_perm_b32 v209, v66, v65, s61"); a("v_perm_b32 v210, v67, v65, s62")
    a("buffer_store_dwordx4 v[208:211], v18, s[32:35], s69 offen sc1")
    FULL()
    stamp(9)
    a("s_branch L_fin")

    a("L_F:")
    a("s_and_b32 s65, s29, 1")
    a("s_lshr_b32 s66, s29, 1"); a("s_mul_i32 s67, s28, 9"); a("s_add_u32 s66, s66, s67")
    a(f"v_add_u32 v19, 36864, v7")
    a("v_lshlrev_b32 v40, 1, v18")
    a("v_lshrrev_b32 v14, 3, v18")
    a("v_lshrrev_b32 v34, 3, v14"); a("v_lshlrev_b32 v34, 6, v34")
    a("v_and_b32 v35, 3, v14"); a("v_lshl_add_u32 v34, v35, 4, v34")
    a("v_bfe_u32 v35, v14, 2, 1"); a("v_lshl_add_u32 v34, v35, 3, v34"); a("v_add_u32 v41, v34, v4")
    a("v_lshl_add_u32 v42, v3, 4, v4")
    a("s_lshl_b32 s51, s49, 3"); a("v_add_u32 v43, s51, v4")
    a("v_and_b32 v44, 1, v3"); a("v_lshlrev_b32 v44, 4, v44")
    a("v_and_b32 v62, 3, v2"); a("v_lshl_add_u32 v62, v62, 5, v44")
    a("v_and_b32 v45, 1, v3"); a("v_lshlrev_b32 v45, 3, v45"); a("v_and_b32 v38, 3, v2"); a("v_lshl_add_u32 v45, v38, 1, v45")
    a("s_lshl_b32 s51, s49, 4"); a("v_add_u32 v45, s51, v45"); a("v_add_u32 v45, v45, v4")
    a("v_mul_u32_u24 v46, 36864, v2"); a("v_lshl_add_u32 v46, v3, 4, v46")
    a("v_lshrrev_b32 v28, 2, v2"); a("v_and_b32 v29, 3, v2")
    a("v_lshrrev_b32 v30, 1, v28"); a("v_and_b32 v31, 1, v3"); a("v_lshlrev_b32 v31, 1, v31"); a("v_xor_b32 v30, v30, v31")
    a("v_xor_b32 v30, s49, v30"); a("v_lshlrev_b32 v30, 5, v30"); a("v_lshl_add_u32 v30, v29, 3, v30")
    a("v_lshl_add_u32 v30, v28, 7, v30"); a("v_lshl_add_u32 v30, v3, 10, v30")
    a(f"v_add_u32 v47, {L_V}, v30"); a("v_xor_b32 v30, 64, v30"); a(f"v_add_u32 v48, {L_V+512}, v30")
    a("v_lshlrev_b32 v50, 16, v16"); a("v_and_b32 v51, 0xffff0000, v16"); a("v_lshlrev_b32 v52, 16, v17"); a("v_and_b32 v53, 0xffff0000, v17")
    a("s_lshl_b32 s67, s66, 10"); a("s_lshl_b32 s68, s49, 7"); a("s_add_u32 s67, s67, s68"); a(f"s_add_u32 s67, s67, {W_E}")
    a("s_lshl_b32 s68, s65, 9"); a("s_add_u32 s69, s67, s68")
    a("s_xor_b32 s68, s68, 512"); a("s_add_u32 s70, s67, s68")
    a("s_mul_i32 s51, s28, 18"); a("s_add_u32 s51, s51, s29"); a("s_lshl_b32 s51, s51, 6")
    a("s_mul_i32 s52, s49, 9216"); a("s_add_u32 s51, s51, s52"); a(f"s_add_u32 s68, s51, {W_D}")
    a(f"s_mov_b32 s66, {W_C}"); a(f"s_mov_b32 s67, {W_C + 4*2304}")
    a("v_add_u32 v49, 6912, v40") if False else None
    a("v_mov_b32 v24, 0x3f803f80"); a("v_mov_b32 v25, v24"); a("v_mov_b32 v26, v24"); a("v_mov_b32 v27, v24")
    for r in range(4): a(f"v_mov_b32 v{20+r}, 0"); a(f"v_mov_b32 v{54+r}, 0")
    a("v_mov_b32 v60, 0"); a("v_mov_b32 v61, 0")
    a("v_add_u32 v49, 4608, v40")
    if cfg.pretouch: a("buffer_load_dwordx4 v[244:247], v44, s[32:35], s69 offen sc1")
    def mat_groups(g0, g1):
        for gi in range(g0, g1):
            wait_prog_s(146 + 12*(gi+1))
            for u in range(3*gi, 3*gi+3):
                base, off = (7, 4096*u) if u < 9 else (19, 4096*(u-9))
                a(f"ds_read_b64_tr_b16 v[{64+4*u}:{65+4*u}], v{base} offset:{L_WQ + off}")
                a(f"ds_read_b64_tr_b16 v[{66+4*u}:{67+4*u}], v{base} offset:{L_WQ + off + 2048}")
            for k, u in enumerate(range(3*gi, 3*gi+3)):
                a(f"s_waitcnt lgkmcnt({4 - 2*k})")
                a(f"v_mfma_f32_16x16x32_bf16 v[54:57], v[{64+4*u}:{67+4*u}], v[24:27], v[54:57]")
    mat_groups(0, cfg.cgrp)
    stamp(7)
    if cfg.hintC:
        a("s_cmp_eq_u32 s49, 0"); a("s_cbranch_scc0 L_nogo")
        if cfg.hscalar:
            a(f"s_add_u32 s52, s26, {W_H + 12}"); a("s_addc_u32 s53, s27, 0")
            L = a.label("Lh"); a(f"{L}:")
            if cfg.hsleep: a(f"s_sleep {cfg.hsleep}")
            for p in range(8): a(f"s_load_dword s{88+p}, s[52:53], {128*p} glc")
            a("s_waitcnt lgkmcnt(0)")
            a("s_xor_b32 s88, s88, s48")
            for p in range(1, 8): a(f"s_xor_b32 s{88+p}, s{88+p}, s48"); a(f"s_or_b32 s88, s88, s{88+p}")
            a("s_cmp_eq_u32 s88, 0"); a(f"s_cbranch_scc1 {L}d")
            spin_tail(L); a(f"{L}d:")
        else:
            a("v_and_b32 v39, 7, v1"); a("v_lshlrev_b32 v39, 7, v39"); a(f"s_mov_b32 s59, {W_H}")
            wait_notice(0, 240)
        arrive(F_GO)
        a("s_branch L_go")
        a("L_nogo:")
        wait_flag(F_GO, 1)
        a("L_go:")
    if cfg.cpoll:
        a("s_add_u32 s52, s26, %d" % (W_C + 12)); a("s_addc_u32 s53, s27, 0")
        a("s_mul_i32 s51, s49, 576"); a("s_add_u32 s52, s52, s51"); a("s_addc_u32 s53, s53, 0")
        L = a.label("Lp"); a(f"{L}:")
        for p in range(8): a(f"s_load_dword s{88+p}, s[52:53], {2304*p} glc")
        a("s_waitcnt lgkmcnt(0)")
        a("s_xor_b32 s88, s88, s48")
        for p in range(1, 8): a(f"s_xor_b32 s{88+p}, s{88+p}, s48"); a(f"s_or_b32 s88, s88, s{88+p}")
        a("s_cmp_eq_u32 s88, 0"); a(f"s_cbranch_scc1 {L}d")
        spin_tail(L); a(f"{L}d:")
    if cfg.cdelay:
        L = a.label("Lt"); a(f"{L}:")
        a("s_memrealtime s[52:53]"); a("s_waitcnt lgkmcnt(0)"); a("s_sub_u32 s52, s52, s72"); a(f"s_cmp_lt_i32 s52, {cfg.cdelay}"); a(f"s_cbranch_scc1 {L}")
    L = a.label("Lg"); a(f"{L}:")
    if cfg.debug: a("s_add_u32 s46, s46, 256")
    if cfg.csleep: a(f"s_sleep {cfg.csleep}")
    for p in range(8):
        vo = 40 if (p & 2) == 0 else 49
        a(f"buffer_load_dwordx4 v[{208+4*p}:{211+4*p}], v{vo}, s[32:35], s{66+p//4} offen offset:{2304*(p&1)} sc1")
    a("s_waitcnt vmcnt(0)")
    tagcheck([208+4*p for p in range(8)], 32, L)
    stamp(8)
    for p in range(8): unpack_b(136+p, 208+4*p)
    for p in range(1, 8): a(f"v_pk_add_f32 v[208:209], v[208:209], v[{208+4*p}:{209+4*p}]")
    for k in range(3): a(f"v_pk_add_f32 v[136:137], v[136:137], v[{138+2*k}:{139+2*k}]")
    a("v_add_f32 v33, v136, v137")
    a("v_add_f32 v35, v210, v214")
    for p in range(2, 8): a(f"v_add_f32 v35, v35, v{210+4*p}")
    a("v_cvt_pk_bf16_f32 v36, v208, v33"); a("v_cvt_pk_bf16_f32 v37, v209, v35")
    a("v_lshlrev_b32 v28, 16, v36"); a("v_and_b32 v29, 0xffff0000, v36"); a("v_lshlrev_b32 v30, 16, v37"); a("v_and_b32 v31, 0xffff0000, v37")
    a("v_pk_add_f32 v[28:29], v[28:29], v[50:51]"); a("v_pk_add_f32 v[30:31], v[30:31], v[52:53]")
    a("v_cvt_pk_bf16_f32 v36, v28, v29"); a("v_cvt_pk_bf16_f32 v37, v30, v31")
    a("s_mov_b32 exec_hi, 15")
    a(f"ds_write_b64 v41, v[36:37] offset:{O_LN2}")
    a("v_lshlrev_b32 v28, 16, v36"); a("v_and_b32 v29, 0xffff0000, v36"); a("v_lshlrev_b32 v30, 16, v37"); a("v_and_b32 v31, 0xffff0000, v37")
    a("v_readfirstlane_b32 s52, v28")
    a("v_pk_add_f32 v[28:29], v[28:29], s[52:53] op_sel_hi:[1,0] neg_lo:[0,1] neg_hi:[0,1]")
    a("v_pk_add_f32 v[30:31], v[30:31], s[52:53] op_sel_hi:[1,0] neg_lo:[0,1] neg_hi:[0,1]")
    a("v_pk_mul_f32 v[32:33], v[28:29], v[28:29]"); a("v_pk_fma_f32 v[32:33], v[30:31], v[30:31], v[32:33]")
    a("v_pk_add_f32 v[28:29], v[28:29], v[30:31]")
    a("v_add_f32 v60, v28, v29"); a("v_add_f32 v61, v32, v33")
    FULL()
    red2("v_add_f32", 60, 61, 32, 33)
    a("v_mul_f32 v32, 0x3be38e39, v60")
    a("v_fma_f32 v61, -v32, v60, v61")
    a("v_add_f32 v60, s52, v32")
    a("s_mov_b64 exec, 1")
    a(f"ds_write_b64 v43, v[60:61] offset:{O_STAT}")
    a(f"ds_add_u32 v4, v5 offset:{F_LN2}")
    FULL()
    mat_groups(cfg.cgrp, 6)
    wait_flag(F_LN2, 4)
    stamp(9)
    if cfg.hintD == "hrdy": a("v_lshlrev_b32 v38, 4, v1"); a("v_mov_b32 v243, v6"); notice(0, 240, 0x400)
    a(f"ds_read_b128 v[28:31], v4 offset:{O_STAT}"); a(f"ds_read_b128 v[32:35], v4 offset:{O_STAT+16}")
    for u in range(18): a(f"ds_read_b128 v[{136+4*u}:{139+4*u}], v42 offset:{O_LN2 + 64*u}")
    fin = ["v_add_f32 v36, v28, v30", "v_add_f32 v37, v32, v34", "v_add_f32 v36, v36, v37", "v_mul_f32 v36, 0x3e800000, v36",
           "v_sub_f32 v28, v28, v36", "v_sub_f32 v30, v30, v36", "v_sub_f32 v32, v32, v36", "v_sub_f32 v34, v34, v36",
           "v_mul_f32 v37, v28, v28", "v_fmac_f32 v37, v30, v30", "v_fmac_f32 v37, v32, v32", "v_fmac_f32 v37, v34, v34",
           "v_add_f32 v29, v29, v31", "v_add_f32 v33, v33, v35", "v_add_f32 v29, v29, v33",
           "v_fmac_f32 v29, 0x43100000, v37", "v_mul_f32 v37, 0x3ae38e39, v29", "v_max_f32 v37, 0, v37",
           "v_cvt_pk_bf16_f32 v38, v37, v36", "v_lshlrev_b32 v37, 16, v38", "v_and_b32 v36, 0xffff0000, v38",
           "v_add_f32 v37, 0x3727c5ac, v37", "v_cvt_pk_bf16_f32 v38, v37, v37", "v_lshlrev_b32 v37, 16, v38",
           "v_sqrt_f32 v37, v37", "v_nop", "v_cvt_pk_bf16_f32 v38, v37, v37", "v_lshlrev_b32 v37, 16, v38", "v_rcp_f32 v37, v37"]
    for u in range(18):
        if u % 2 == 0 or u == 17: a(f"s_waitcnt lgkmcnt({min(15, max(0, 16 - u))})")
        a(f"v_mfma_f32_16x16x32_bf16 v[20:23], v[{64+4*u}:{67+4*u}], v[{136+4*u}:{139+4*u}], v[20:23]")
        for _ in range(2):
            if fin and u >= 1: a(fin.pop(0))
    for x in fin: a(x)
    a("v_pk_fma_f32 v[20:21], v[54:55], v[36:37], v[20:21] op_sel_hi:[1,0,1] neg_lo:[1,0,0] neg_hi:[1,0,0]")
    a("v_pk_fma_f32 v[22:23], v[56:57], v[36:37], v[22:23] op_sel_hi:[1,0,1] neg_lo:[1,0,0] neg_hi:[1,0,0]")
    a("v_pk_mul_f32 v[20:21], v[20:21], v[36:37] op_sel:[0,1] op_sel_hi:[1,1]")
    a("v_pk_mul_f32 v[22:23], v[22:23], v[36:37] op_sel:[0,1] op_sel_hi:[1,1]")
    rnd2(20, 21, 24); rnd2(22, 23, 25)
    a("s_cmp_eq_u32 s65, 0")
    a("s_cselect_b32 exec_lo, 0, 0x000f000f"); a("s_cselect_b32 exec_hi, 0x000f000f, 0")
    pack_gran(24, 20)
    lstore("buffer_store_dwordx4 v[24:27], v62, s[32:35], s70 offen", "E")
    FULL()
    stamp(10)
    if cfg.hintD == "send": a("v_lshlrev_b32 v38, 4, v1"); a("v_mov_b32 v243, v6"); notice(0, 240, 0x400)
    def e_between():
        a("s_mov_b32 s52, 0x22222222"); a("s_mov_b32 s53, 0x22222222")
        a("s_mov_b32 s54, 0x44444444"); a("s_mov_b32 s55, 0x44444444")
        a("s_mov_b32 s56, 0x88888888"); a("s_mov_b32 s57, 0x88888888")
        a("s_cmp_eq_u32 s65, 0"); a("s_cselect_b64 s[58:59], 0, -1")
        a("v_cndmask_b32 v34, v20, v21, s[52:53]"); a("v_cndmask_b32 v34, v34, v22, s[54:55]"); a("v_cndmask_b32 v34, v34, v23, s[56:57]")
        for r in range(4): a(f"v_mov_b32 v{20+r}, 0")
        for ck in range(9):
            if ck % 3 == 0: wait_prog_s(218 + 4*(ck+3))
            a(f"ds_read_b64_tr_b16 v[{64+4*ck}:{65+4*ck}], v47 offset:{4096*ck}")
            a(f"ds_read_b64_tr_b16 v[{66+4*ck}:{67+4*ck}], v48 offset:{4096*ck}")
    ES = [100, 104, 108][:cfg.esets]
    rolling(len(ES), 1, lambda k: a(f"buffer_load_dwordx4 v[{ES[k]}:{ES[k]+3}], v44, s[32:35], s69 offen sc1"),
            lambda k: chk([ES[k]], 35),
            lambda k: (a(f"v_mov_b32 v24, v{ES[k]}"), a(f"v_mov_b32 v25, v{ES[k]+1}"), a(f"v_mov_b32 v26, v{ES[k]+2}")), between=e_between)
    stamp(11)
    unpack_b(28, 24)
    a("v_cndmask_b32 v35, v24, v28, s[52:53]"); a("v_cndmask_b32 v35, v35, v25, s[54:55]"); a("v_cndmask_b32 v35, v35, v26, s[56:57]")
    a("v_and_b32 v35, 0xffff0000, v35")
    a("v_cndmask_b32 v36, v34, v35, s[58:59]")
    a("v_cndmask_b32 v37, v35, v34, s[58:59]")
    a("v_mul_f32 v38, v36, v36"); a("v_mov_b32 v39, 1.0"); a("v_fmac_f32 v39, 0x3d372713, v38")
    a("v_mul_f32 v39, v39, v36")
    a("v_mul_f32 v39, 0xc0135761, v39")
    a("v_exp_f32 v39, v39"); a("v_add_f32 v39, 1.0, v39"); a("v_rcp_f32 v39, v39"); a("v_mul_f32 v39, v39, v36")
    rnd1(39, 38)
    a("v_mul_f32 v39, v39, v37"); a("v_cvt_pk_bf16_f32 v39, v39, v39")
    a("s_cmp_eq_u32 s65, 0")
    a("s_cselect_b32 exec_lo, 0x000f000f, 0"); a("s_cselect_b32 exec_hi, 0, 0x000f000f")
    a(f"ds_write_b16 v45, v39 offset:{O_HH}")
    a("s_mov_b32 s52, 0x00010001"); a("s_mov_b32 s53, 0x00010001")
    a("s_waitcnt lgkmcnt(0)")
    FULL()
    a("s_barrier")
    a(f"ds_read_b128 v[24:27], v42 offset:{O_HH}")
    a("v_mov_b32 v43, v6")
    a("s_waitcnt lgkmcnt(0)")
    for ck in range(9):
        B = 28 + 4*(ck & 1)
        for r in range(4): a(f"v_cndmask_b32 v{B+r}, 0, v{24+r}, s[52:53]")
        if ck < 8: a("s_lshl_b64 s[52:53], s[52:53], 1")
        a(f"v_mfma_f32_16x16x32_bf16 v[20:23], v[{64+4*ck}:{67+4*ck}], v[{B}:{B+3}], v[20:23]")
    a("s_mov_b32 exec_lo, 0x01ff01ff"); a("s_mov_b32 exec_hi, 0x01ff01ff")
    a("v_perm_b32 v40, v20, v21, s60"); a("v_perm_b32 v41, v22, v21, s61"); a("v_perm_b32 v42, v23, v21, s62")
    a("buffer_store_dwordx4 v[40:43], v46, s[32:35], s68 offen sc1")
    FULL()

    a("L_fin:")
    if cfg.debug:
        a("s_memrealtime s[96:97]")
        a("s_getreg_b32 s71, hwreg(HW_REG_XCC_ID)")
        a("s_waitcnt lgkmcnt(0) vmcnt(0)")
        a("s_mov_b64 exec, -1")
        a("s_mov_b32 s98, s46")
        srd(44, 26, W_SIZE + 0x100000)
        for k in range(12): a(f"v_mov_b32 v{20+k}, s{72+2*k}")
        a("v_mov_b32 v32, s96"); a("v_mov_b32 v33, s71"); a("v_mov_b32 v34, s50"); a("v_mov_b32 v35, s98")
        a("s_mul_i32 s51, s2, 5"); a("s_add_u32 s51, s51, s3"); a("s_lshl_b32 s51, s51, 6"); a(f"s_add_u32 s51, s51, {W_STAMP}")
        a("v_mov_b32 v14, 0")
        a("s_mov_b64 exec, 1")
        for k in range(4): a(f"buffer_store_dwordx4 v[{20+4*k}:{23+4*k}], v14, s[44:47], s51 offen offset:{16*k}")
    a("s_waitcnt vmcnt(0)")
    a("L_end:")
    a("s_endpgm")
    body = a.text()
    nbytes_est = 0
    head = f"""; sequential pre-LN decode layer: LN -> q -> sliding-window GQA attention -> wo -> LN -> GeGLU FFN
; @launch grid=(256,1,1) block=(320,1,1) lds={LDS_BYTES}
.amdgcn_target "amdgcn-amd-amdhsa--gfx950"
.set CODE_KB, {cfg.code_kb if hasattr(cfg, 'code_kb') else 14}
.set CODE_BYTES, {cfg.code_bytes if hasattr(cfg, 'code_bytes') else 8192}
.text
.globl {NAME}
.p2align 8
.type {NAME},@function
{NAME}:
"""
    tail = '.section .rodata,"a"\n.p2align 6\n' + KD.format(name=NAME, vgpr=256, sgpr=100, accum=256)
    return head + body + tail

if __name__ == "__main__":
    dbg = "debug" in sys.argv
    s = gen(Cfg(debug=dbg))
    out = sys.argv[1] if len(sys.argv) > 1 else "sequential_preLN__sliding_block_cached__glu_gated_geglu__decode.s"
    open(out, "w").write(s)
    print("wrote", out, len(s), "bytes")
```

```python
import sys
from asmb import Asm, KD

NAME = "sequential_preLN__sliding_block_cached__glu_gated_geglu__decode_kernel"

L_WQ, L_K, L_V, L_SCR = 0, 18432, 83968, 149504
LDS_BYTES = 163840
O_PROG = 0
O_FL = 256
F_KFREE, F_VFREE, F_QRDY, F_LOC, F_MAXR, F_PRDY, F_RED, F_ST, F_LN2, F_HH, F_GO = [O_FL + 4*k for k in range(11)]
O_LN1 = 512
O_Q = 1664
O_MX = 2176
O_LS = 2208
O_P = 2304
O_LN2 = 3328
O_RED = 4480
O_STAT = 5504
O_HH = 5568
W_EPOCH = 0
W_A = 0x1000
W_B = 0x20000
W_ML = 0x60000
W_C = 0x70000
W_E = 0x78000
W_D = 0x90000
W_X = 0xF0000
W_H = 0xF8000
W_SIZE = 0x100000
W_STAMP = 0x100000
TAG_INC = 0x9E3779B9
SCALE = 0x3DB504F3
LOG2E = 0x3FB8AA3B

class Cfg:
    W = 24
    WF = 40
    WS = 40
    WS0 = 36
    nt = True
    debug = False
    budget = 2000000
    prefetch_code = False
    cpoll = False
    zsets = 1
    ssets = 1
    esets = 2
    pvgroups = [[0,1,2,3],[4,5],[6],[7]]
    WF1 = 16
    NF1 = 24
    nopub = False
    cgrp = 6
    tlbwarm = True
    hintC = False
    hintD = None
    hsleep = 1
    hscalar = True
    pf_top = True
    Wlate = 0
    WS0late = 40
    cdelay = 0
    zpf = 0
    kfirst = 0
    zwo = 0
    WD = 0
    pretouch = True
    transposed = False
    use_local = True
    ackstamp = False
    force_local = ''
    nopub2 = False
    nopv = False
    nogather = False
    lsleep = 0
    qsleep = 0
    noqcheck = False
    stop_after = None
    loader_only = False
    rot = 0
    csleep = 0
    def __init__(self, **k):
        for a, b in k.items(): setattr(self, a, b)

def gen(cfg):
    a = Asm()
    ntf = " nt" if cfg.nt else ""
    nstamp = [0]
    def stamp(k):
        if cfg.debug:
            a(f"s_memrealtime s[{72+2*k}:{73+2*k}]")
    def srd(d, p, size):
        a(f"s_mov_b32 s{d}, s{p}"); a(f"s_mov_b32 s{d+1}, s{p+1}")
        a(f"s_mov_b32 s{d+2}, {size}"); a(f"s_mov_b32 s{d+3}, 0x20000")
    def spin_tail(L):
        a("s_sub_u32 s50, s50, 1")
        a(f"s_cbranch_scc0 {L}")
        a("s_mov_b32 s50, 0")
    def wait_flag(off, n, vt=15, signed=False):
        L = a.label("Lw")
        a(f"{L}:")
        if cfg.lsleep: a(f"s_sleep {cfg.lsleep}")
        a(f"ds_read_b32 v{vt}, v4 offset:{off}")
        a("s_waitcnt lgkmcnt(0)")
        a(f"v_readfirstlane_b32 s51, v{vt}")
        a(f"s_cmp_ge_i32 s51, {n}")
        a(f"s_cbranch_scc1 {L}d")
        spin_tail(L)
        a(f"{L}d:")
    def arrive(off):
        a("s_mov_b64 exec, 1")
        a(f"ds_add_u32 v4, v5 offset:{off}")
        a("s_mov_b64 exec, -1")
    def row_red(op, v, steps=(8, 4, 2, 1)):
        for s in steps:
            a(f"{op}_dpp v{v}, v{v}, v{v} row_ror:{s} row_mask:0xf bank_mask:0xf")
    def xrow_red(op, v, t):
        a(f"v_mov_b32 v{t}, v{v}"); a(f"v_permlane16_swap_b32 v{v}, v{t}"); a(f"{op} v{v}, v{v}, v{t}")
        a(f"v_mov_b32 v{t}, v{v}"); a(f"v_permlane32_swap_b32 v{v}, v{t}"); a(f"{op} v{v}, v{v}, v{t}")
    def all_red(op, v, t):
        row_red(op, v); xrow_red(op, v, t)
    def rnd1(v, t):
        a(f"v_cvt_pk_bf16_f32 v{t}, v{v}, v{v}"); a(f"v_lshlrev_b32 v{v}, 16, v{t}")
    def rnd2(x, y, t):
        a(f"v_cvt_pk_bf16_f32 v{t}, v{x}, v{y}"); a(f"v_lshlrev_b32 v{x}, 16, v{t}"); a(f"v_and_b32 v{y}, 0xffff0000, v{t}")
    def pack_gran(d, q):
        a(f"v_perm_b32 v{d}, v{q}, v{q+1}, s60")
        a(f"v_perm_b32 v{d+1}, v{q+2}, v{q+1}, s61")
        a(f"v_perm_b32 v{d+2}, v{q+3}, v{q+1}, s62")
        a(f"v_mov_b32 v{d+3}, v6")
    def unpack_b(dst, gq):
        a(f"v_perm_b32 v{dst}, v{gq+2}, v{gq+1}, s63")
        a(f"v_perm_b32 v{dst}, v{dst}, v{gq}, s64")
    def tagcheck(grs, acc, L):
        a(f"v_xor_b32 v{acc}, v{grs[0]+3}, v6")
        for gq in grs[1:]:
            a(f"v_bitop3_b32 v{acc}, v{gq+3}, v6, v{acc} bitop3:0xbe")
        a(f"v_cmp_ne_u32 vcc, 0, v{acc}")
        a(f"s_cbranch_vccz {L}d")
        spin_tail(L)
        a(f"{L}d:")

    if cfg.debug:
        for k in range(72, 99): a(f"s_mov_b32 s{k}, 0")
    stamp(0)
    a("s_cmp_ge_u32 s2, 256"); a("s_cbranch_scc1 L_end")
    a("s_load_dwordx16 s[4:19], s[0:1], 0")
    a("s_load_dwordx8 s[20:27], s[0:1], 64")
    if cfg.prefetch_code and cfg.pf_top:
        a("s_lshr_b32 s3, s2, 3"); a("s_cmp_ge_u32 s3, 28"); a("s_cbranch_scc0 L_nopf")
        a("v_cmp_le_u32 vcc, 64, v0"); a("s_cbranch_vccz L_nopf")
        a("s_getpc_b64 s[52:53]")
        a("s_and_b32 s52, s52, 0xffffff00")
        a("s_sub_u32 s3, s3, 28"); a("s_lshl_b32 s3, s3, 12")
        a("v_subrev_u32 v15, 64, v0"); a("v_lshlrev_b32 v15, 4, v15"); a("v_add_u32 v15, s3, v15")
        a("v_cmp_gt_u32 vcc, CODE_BYTES, v15"); a("s_and_saveexec_b64 s[54:55], vcc"); a("s_cbranch_execz L_pfx")
        a("global_load_dwordx4 v[252:255], v15, s[52:53]")
        a("L_pfx:")
        a("s_mov_b64 exec, s[54:55]")
        a("v_add_u32 v15, 16384, v15")
        a("v_cmp_gt_u32 vcc, CODE_BYTES, v15"); a("s_and_saveexec_b64 s[54:55], vcc"); a("s_cbranch_execz L_pfy")
        a("global_load_dwordx4 v[252:255], v15, s[52:53]")
        a("L_pfy:")
        a("s_mov_b64 exec, s[54:55]")
        a("L_nopf:")
    a("v_lshrrev_b32 v2, 6, v0")
    a("v_and_b32 v1, 63, v0")
    if cfg.transposed: a("s_lshr_b32 s28, s2, 5")
    else: a("s_and_b32 s28, s2, 7")
    a("v_readfirstlane_b32 s3, v2")
    if cfg.transposed: a("s_and_b32 s29, s2, 31")
    else: a("s_lshr_b32 s29, s2, 3")
    a("s_lshr_b32 s30, s29, 4"); a("s_lshl_b32 s31, s28, 1"); a("s_add_u32 s30, s30, s31")
    a("s_and_b32 s31, s29, 15")
    a(f"s_mov_b32 s50, {cfg.budget}")
    a(f"v_mov_b32 v4, {L_SCR}")
    a("s_cmp_eq_u32 s3, 0"); a("s_cbranch_scc0 L_compute")

    a("s_setprio 3")
    a("v_mov_b32 v6, 0"); a("v_mov_b32 v7, 0")
    a("v_lshl_add_u32 v5, v1, 3, v4")
    a("ds_write_b64 v5, v[6:7]")
    a("v_lshrrev_b32 v2, 3, v1"); a("v_and_b32 v3, 7, v1")
    a("v_bfe_u32 v8, v2, 1, 2"); a("v_lshlrev_b32 v8, 1, v8"); a("v_xor_b32 v3, v3, v8"); a("v_lshlrev_b32 v3, 4, v3")
    a("v_lshl_add_u32 v10, v2, 13, v3")
    a("v_mul_u32_u24 v8, 1152, v2"); a("v_add_u32 v11, v8, v3")
    a("v_xor_b32 v19, 64, v11")
    a("v_mul_u32_u24 v8, 9216, v2"); a("v_add_u32 v18, v8, v3")
    a("v_lshrrev_b32 v2, 4, v1"); a("v_and_b32 v3, 15, v1")
    a("v_xor_b32 v8, v3, v2"); a("v_lshlrev_b32 v8, 4, v8"); a("v_lshl_add_u32 v12, v2, 8, v8")
    a("v_xor_b32 v13, 64, v12"); a("v_xor_b32 v14, 0x80, v12"); a("v_xor_b32 v15, 0xc0, v12")
    a("v_lshlrev_b32 v8, 1, v2"); a("v_xor_b32 v8, v3, v8"); a("v_lshlrev_b32 v8, 4, v8"); a("v_lshl_add_u32 v16, v2, 8, v8")
    a("v_xor_b32 v17, 0x80, v16")
    a("v_lshl_add_u32 v21, v1, 2, v4")
    a("s_lshr_b32 s64, s31, 2"); a(f"s_mul_i32 s64, s64, {144*8192}")
    a("s_and_b32 s65, s31, 3"); a("s_lshl_b32 s65, s65, 7"); a("s_add_u32 s64, s64, s65")
    a("s_lshl_b32 s65, s30, 9"); a("s_add_u32 s64, s64, s65")
    a("s_lshl_b32 s65, s30, 24"); a(f"s_add_u32 s65, s65, {61440*256}")
    a("s_lshl_b32 s66, s31, 16"); a("s_add_u32 s65, s65, s66")
    if cfg.rot:
        a(f"s_mul_i32 s69, s2, {cfg.rot}"); a("s_lshr_b32 s70, s69, 4"); a("s_add_u32 s69, s69, s70"); a("s_and_b32 s69, s69, 15"); a("s_lshl_b32 s69, s69, 12")
    else:
        a("s_mov_b32 s69, 0")
    a(f"s_mov_b32 m0, {L_WQ}")
    a("s_mov_b32 s46, 4718592"); a("s_mov_b32 s47, 0x20000")
    a("s_waitcnt lgkmcnt(0)")
    a("s_mov_b32 s44, s10"); a("s_mov_b32 s45, s11")
    stamp(1)
    st = dict(W=cfg.W)
    def pub():
        a("v_add_u32 v20, 1, v20"); a("ds_write_b32 v21, v20")
    def issue(voff, soff, imm=0, wait=True):
        a(f"buffer_load_dwordx4 v{voff}, s[44:47], {soff} offen offset:{imm}{ntf} lds")
        if wait:
            a(f"s_waitcnt vmcnt({st['W']-1})"); pub()
    def loop_begin(n):
        L = a.label("Ll"); a(f"s_mov_b32 s67, {n}"); a(f"{L}:"); return L
    def loop_end(L):
        a("s_sub_u32 s67, s67, 1"); a("s_cbranch_scc0 " + L)
    loop_begin0 = loop_begin
    def loop_begin(n): return loop_begin0(n - 1)
    assert cfg.W - 1 >= 18
    L = loop_begin(6)
    for q in range(3):
        issue(10, "s64", wait=False)
        a("s_add_u32 m0, m0, 1024"); a(f"s_add_u32 s64, s64, {8*8192}")
    loop_end(L)
    stamp(6)
    a("s_barrier")
    stamp(7)
    def kv(ptr, lds, vo, nv, first=0):
        srd(44, ptr, 0x10000000)
        a(f"s_mov_b32 m0, {lds}"); a("s_mov_b32 s68, s69")
        def chunk(wait):
            a("s_add_u32 s66, s65, s68")
            for q in range(4): issue(vo + (q % nv), "s66", q*1024, wait=wait)
            a("s_add_u32 m0, m0, 4096"); a("s_add_u32 s68, s68, 4096"); a("s_and_b32 s68, s68, 0xffff")
        if first:
            Wst = st['W']
            for c in range(first): chunk(False)
            W0 = 18 + 4*first + 1
            a(f"v_mov_b32 v20, {18 + 4*first - (W0 - 1)}")
            for k in range(W0 - Wst):
                a(f"s_waitcnt vmcnt({W0 - 2 - k})"); pub()
        L = loop_begin(16 - first)
        chunk(True)
        loop_end(L)
    def kvphases():
        kv(6, L_K, 12, 4, first=(cfg.kfirst if 18 + 4*cfg.kfirst + 1 > st['W'] else 0))
        stamp(2)
        kv(8, L_V, 16, 2)
        stamp(3)
    def loader_body(Wa, WS0a, sfx):
        a("s_cmp_lt_u32 s29, 18"); a("s_cbranch_scc1 L_ldA" + sfx)
        a("s_cmp_lt_u32 s29, 27"); a("s_cbranch_scc1 L_ldS0" + sfx)
        a("L_ldA" + sfx + ":"); st["W"] = Wa; a(f"v_mov_b32 v20, {18-(Wa-1)}")
        kvphases()
        def lwait_flag(off, n):
            L = a.label("Lw")
            a(f"{L}:")
            a(f"ds_read_b32 v22, v4 offset:{off}")
            a("s_waitcnt lgkmcnt(0)")
            a("v_readfirstlane_b32 s51, v22")
            a(f"s_cmp_ge_i32 s51, {n}")
            a(f"s_cbranch_scc1 {L}d")
            spin_tail(L)
            a(f"{L}d:")
        def widen_issue(newW, emit_one):
            for k in range(newW - st['W']): emit_one(False)
            st['W'] = newW
        def drain():
            for k in range(st['W']-2, -1, -1):
                a(f"s_waitcnt vmcnt({k})"); pub()
        a("s_cmp_lt_u32 s29, 18"); a("s_cbranch_scc1 L_ldF" + sfx)
        st['W'] = Wa
        if cfg.zwo:
            lwait_flag(F_KFREE, 4)
            srd(44, 12, 4718592)
            a("s_sub_u32 s64, s29, 27")
            a(f"s_mul_i32 s60, s28, {512*1152}"); a(f"s_add_u32 s60, s60, {(64 - cfg.zwo)*8*1152}"); a("s_lshl_b32 s61, s64, 7"); a("s_add_u32 s60, s60, s61")
            a("s_add_u32 s61, s60, 640"); a("s_cmp_lt_u32 s64, 4"); a("s_cselect_b32 s61, s61, 0x40000000")
            a(f"s_mov_b32 m0, {L_K}")
            L = loop_begin(cfg.zwo)
            a("buffer_load_dwordx4 v11, s[44:47], s60 offen lds")
            a(f"s_waitcnt vmcnt({st['W']-1})"); pub()
            a("buffer_load_dwordx4 v11, s[44:47], s61 offen lds")
            a(f"s_waitcnt vmcnt({st['W']-1})"); pub()
            a(f"s_add_u32 s60, s60, {8*1152}"); a(f"s_add_u32 s61, s61, {8*1152}")
            loop_end(L)
        if cfg.zpf:
            lwait_flag(F_KFREE, 4)
            a("s_sub_u32 s64, s29, 27")
            a("s_bitcmp1_b32 s64, 0")
            a("s_cselect_b32 s44, s18, s16"); a("s_cselect_b32 s45, s19, s17"); a("s_mov_b32 s46, 5308416"); a("s_mov_b32 s47, 0x20000")
            a("s_lshr_b32 s56, s44, 7"); a("s_mul_i32 s57, s28, 9"); a("s_add_u32 s56, s56, s57")
            a("s_sub_u32 s56, 3, s56"); a("s_and_b32 s56, s56, 7")
            a("s_add_u32 s56, s56, s57"); a("s_lshl_b32 s60, s56, 7")
            a("s_lshr_b32 s58, s64, 1")
            a("s_cmp_eq_u32 s58, 2"); a("s_cbranch_scc1 L_zpf9" + sfx)
            a(f"s_mul_i32 s58, s58, {cfg.zpf*8*9216}"); a(f"s_add_u32 s60, s60, {(72 - 2*cfg.zpf)*8*9216}"); a("s_add_u32 s60, s60, s58")
            a(f"s_mov_b32 m0, {L_K}")
            L = loop_begin(cfg.zpf)
            a("buffer_load_dwordx4 v18, s[44:47], s60 offen lds")
            a(f"s_waitcnt vmcnt({st['W']-1})"); pub()
            a(f"s_add_u32 s60, s60, {8*9216}")
            loop_end(L)
            a("s_branch L_zpfe" + sfx)
            a("L_zpf9" + sfx + ":")
            a("s_sub_u32 s58, s56, s57"); a("s_cmp_eq_u32 s58, 0"); a("s_cbranch_scc0 L_zpfe" + sfx)
            a(f"s_add_u32 s60, s60, {8*128 + (72 - cfg.zpf)*8*9216}")
            a("s_mov_b32 s52, s18"); a("s_mov_b32 s53, s19"); a("s_mov_b32 s54, 5308416"); a("s_mov_b32 s55, 0x20000")
            a(f"s_mov_b32 m0, {L_K}")
            L = loop_begin(cfg.zpf)
            a("buffer_load_dwordx4 v18, s[44:47], s60 offen lds")
            a(f"s_waitcnt vmcnt({st['W']-1})"); pub()
            a("buffer_load_dwordx4 v18, s[52:55], s60 offen lds")
            a(f"s_waitcnt vmcnt({st['W']-1})"); pub()
            a(f"s_add_u32 s60, s60, {8*9216}")
            loop_end(L)
            a("L_zpfe" + sfx + ":")
        drain()
        a("s_branch L_ldEnd")
        a("L_ldS0" + sfx + ":")
        st['W'] = WS0a
        a(f"v_mov_b32 v20, {18-(WS0a-1)}")
        kvphases()
        lwait_flag(F_KFREE, 4)
        srd(44, 12, 4718592)
        a("s_sub_u32 s66, s29, 18"); a("s_lshl_b32 s66, s66, 7"); a(f"s_mul_i32 s68, s28, {512*1152}"); a("s_add_u32 s66, s66, s68")
        a(f"s_mov_b32 m0, {L_WQ}")
        a("v_lshrrev_b32 v2, 3, v1"); a("v_and_b32 v3, 7, v1"); a("v_bfe_u32 v8, v2, 1, 1"); a("v_lshlrev_b32 v8, 1, v8"); a("v_xor_b32 v3, v3, v8")
        a("v_lshlrev_b32 v3, 4, v3"); a("v_mul_u32_u24 v8, 1152, v2"); a("v_add_u32 v24, v8, v3"); a("v_xor_b32 v23, 64, v24")
        cnt = [0]
        def one_wo(wait):
            issue(23 if (cnt[0] >> 1) & 1 else 24, "s66", wait=wait); a("s_add_u32 m0, m0, 1024"); a(f"s_add_u32 s66, s66, {8*1152}")
            cnt[0] += 1
        ex = (cfg.WS - st['W'] + 3) // 4 * 4 if cfg.WS > st['W'] else 0
        widen_issue(st['W'] + ex, one_wo)
        L = loop_begin((64 - ex) // 4)
        for q in range(4): one_wo(True)
        loop_end(L)
        drain()
        a("s_branch L_ldEnd")
        a("L_ldF" + sfx + ":")
        st['W'] = Wa
        lwait_flag(F_KFREE, 4)
        srd(44, 16, 5308416)
        a("s_bitcmp1_b32 s29, 0"); a("s_cselect_b32 s44, s18, s16"); a("s_cselect_b32 s45, s19, s17")
        a("s_lshr_b32 s68, s29, 1"); a("s_mul_i32 s69, s28, 9"); a("s_add_u32 s68, s68, s69")
        a("s_lshl_b32 s66, s68, 7")
        a(f"s_mov_b32 m0, {L_WQ}")
        def one_m(wait):
            issue(18, "s66", wait=wait); a("s_add_u32 m0, m0, 1024"); a(f"s_add_u32 s66, s66, {8*9216}")
        if cfg.WF1 and cfg.WF1 < Wa:
            for k in range(Wa - cfg.WF1):
                a(f"s_waitcnt vmcnt({Wa - 2 - k})"); pub()
            st['W'] = cfg.WF1
            L = loop_begin(cfg.NF1); one_m(True); loop_end(L)
            done = cfg.NF1
        else:
            done = 0
        ex = cfg.WF - st['W']
        widen_issue(cfg.WF, one_m)
        L = loop_begin(72 - done - ex); one_m(True); loop_end(L)
        stamp(4)
        if cfg.WD and cfg.WD < st['W']:
            for k in range(st['W'] - cfg.WD):
                a(f"s_waitcnt vmcnt({st['W'] - 2 - k})"); pub()
            st['W'] = cfg.WD
        lwait_flag(F_VFREE, 4)
        srd(44, 20, 5308416)
        a("s_and_b32 s69, s29, 1"); a("s_lshl_b32 s69, s69, 3"); a("s_lshl_b32 s68, s68, 6"); a("s_add_u32 s68, s68, s69")
        a("s_mul_i32 s66, s68, 1152")
        a(f"s_mov_b32 m0, {L_V}")
        L = loop_begin(9)
        for o in range(4):
            a(f"s_add_u32 s68, s66, {o*16*1152}")
            issue(19 if (o & 1) else 11, "s68")
            a("s_add_u32 m0, m0, 1024")
        a("s_add_u32 s66, s66, 128")
        loop_end(L)
        drain()
        a("s_branch L_ldEnd")
    if cfg.Wlate:
        a("s_getreg_b32 s64, hwreg(HW_REG_XCC_ID, 0, 4)"); a("s_cmp_ge_u32 s64, 4"); a("s_cbranch_scc1 L_ldLate")
        loader_body(cfg.W, cfg.WS0, "e")
        a("L_ldLate:")
        loader_body(cfg.Wlate, cfg.WS0late, "l")
    else:
        loader_body(cfg.W, cfg.WS0, "")
    a("L_ldEnd:")
    stamp(5)
    a("s_branch L_fin")

    DPP = "row_mask:0xf bank_mask:0xf"
    J0 = lambda: (a("s_mov_b32 exec_lo, 0x00010001"), a("s_mov_b32 exec_hi, 0x00010001"))
    J01 = lambda: (a("s_mov_b32 exec_lo, 0x00030003"), a("s_mov_b32 exec_hi, 0x00030003"))
    FULL = lambda: a("s_mov_b64 exec, -1")
    def wait_prog_s(thr):
        L = a.label("Lw")
        a(f"s_cmp_ge_i32 s47, {thr}"); a(f"s_cbranch_scc1 {L}d")
        a(f"{L}:")
        if cfg.lsleep: a(f"s_sleep {cfg.lsleep}")
        a(f"ds_read_b32 v15, v4 offset:{O_PROG}"); a("s_waitcnt lgkmcnt(0)"); a("v_readfirstlane_b32 s47, v15")
        a(f"s_cmp_ge_i32 s47, {thr}"); a(f"s_cbranch_scc1 {L}d"); spin_tail(L); a(f"{L}d:")
    def red2(op, x, y, tx, ty):
        for s_ in (8, 4, 2, 1):
            a(f"{op}_dpp v{x}, v{x}, v{x} row_ror:{s_} {DPP}"); a(f"{op}_dpp v{y}, v{y}, v{y} row_ror:{s_} {DPP}")
        for sw in ("v_permlane16_swap_b32", "v_permlane32_swap_b32"):
            a(f"v_mov_b32 v{tx}, v{x}"); a(f"v_mov_b32 v{ty}, v{y}")
            a(f"{sw} v{x}, v{tx}"); a(f"{sw} v{y}, v{ty}")
            a(f"{op} v{x}, v{x}, v{tx}"); a(f"{op} v{y}, v{y}, v{ty}")
    def ln_final(mean, var, t):
        a(f"v_max_f32 v{var}, 0, v{var}")
        a(f"v_cvt_pk_bf16_f32 v{t}, v{var}, v{mean}")
        a(f"v_lshlrev_b32 v{var}, 16, v{t}"); a(f"v_and_b32 v{mean}, 0xffff0000, v{t}")
        a(f"v_add_f32 v{var}, 0x3727c5ac, v{var}"); rnd1(var, t)
        a(f"v_sqrt_f32 v{var}, v{var}"); rnd1(var, t); a(f"v_rcp_f32 v{var}, v{var}")

    def chk(grs, acc):
        a(f"v_xor_b32 v{acc}, v{grs[0]+3}, v6")
        for gq in grs[1:]: a(f"v_bitop3_b32 v{acc}, v{gq+3}, v6, v{acc} bitop3:0xbe")
        a(f"v_cmp_ne_u32 vcc, 0, v{acc}")
    def notice(i_sel, dreg, off):
        L = a.label("Ln")
        a(f"s_cmp_eq_u32 s29, {i_sel}"); a(f"s_cbranch_scc0 {L}")
        a("s_cmp_eq_u32 s49, 0"); a(f"s_cbranch_scc0 {L}")
        a("s_lshl_b32 s51, s28, 7"); a(f"s_add_u32 s51, s51, {W_H + off}")
        a("s_mov_b64 exec, 0xff")
        a(f"buffer_store_dwordx4 v[{dreg}:{dreg+3}], v38, s[32:35], s51 offen sc1")
        FULL()
        a(f"{L}:")
    def wait_notice(off, vt):
        L = a.label("Lh"); a(f"{L}:")
        if cfg.hsleep: a(f"s_sleep {cfg.hsleep}")
        a(f"buffer_load_dwordx4 v[{vt}:{vt+3}], v39, s[32:35], s59 offen sc1")
        a("s_waitcnt vmcnt(0)")
        a(f"v_cmp_ne_u32 vcc, v{vt+3}, v6"); a(f"s_cbranch_vccz {L}d")
        spin_tail(L)
        a(f"{L}d:")
    def lstore(txt, key):
        if key in cfg.force_local:
            a(txt); return
        if not cfg.use_local:
            a(txt + " sc1"); return
        L = a.label("Ls")
        a("s_cmp_eq_u32 s45, 1"); a(f"s_cbranch_scc1 {L}p")
        a(txt + " sc1"); a(f"s_branch {L}q")
        a(f"{L}p:"); a(txt); a(f"{L}q:")
    a("L_compute:")
    a("s_sub_u32 s49, s3, 1")
    a("s_mov_b32 s47, -1000")
    if cfg.debug: a("s_mov_b32 s46, 0")
    a("v_and_b32 v2, 15, v1"); a("v_lshrrev_b32 v3, 4, v1")
    a("v_mov_b32 v5, 1")
    a("s_mov_b32 s60, 0x07060501"); a("s_mov_b32 s61, 0x07060502"); a("s_mov_b32 s62, 0x07060503")
    a("s_mov_b32 s63, 0x04000c0c"); a("s_mov_b32 s64, 0x0706000c")
    a("v_lshlrev_b32 v14, 5, v1")
    a("v_min_u32 v15, 35, v1"); a("s_mul_i32 s51, s49, 36"); a("v_add_u32 v15, s51, v15"); a("v_lshlrev_b32 v18, 3, v15")
    a("s_mul_i32 s52, s28, 5"); a("s_add_u32 s52, s52, s29"); a("s_sub_u32 s52, s52, 27")
    a("s_lshl_b32 s53, s52, 5"); a("v_and_b32 v19, 3, v1"); a("v_lshl_add_u32 v19, v19, 3, s53")
    a("s_cmp_ge_u32 s29, 27"); a("s_cselect_b64 s[56:57], -1, 0")
    a("v_cndmask_b32 v18, v18, v19, s[56:57]")
    a("s_waitcnt lgkmcnt(0)")
    srd(36, 4, 1152)
    a("buffer_load_dwordx4 v[20:23], v14, s[36:39], 0 offen")
    a("buffer_load_dwordx4 v[24:27], v14, s[36:39], 0 offen offset:16")
    a("buffer_load_dwordx2 v[16:17], v18, s[36:39], 0 offen")
    a("s_load_dword s48, s[26:27], 0")
    if cfg.tlbwarm:
        a("s_cmp_ge_u32 s29, 27"); a("s_cbranch_scc0 L_notlb")
        a("s_sub_u32 s51, s29, 27"); a("s_lshl_b32 s51, s51, 2"); a("s_add_u32 s51, s51, s49")
        a("v_min_u32 v15, 2, v1"); a("v_lshlrev_b32 v15, 21, v15")
        a("s_cmp_lt_u32 s51, 2"); a("s_cbranch_scc1 L_tlbkv")
        a("s_cmp_lt_u32 s51, 7"); a("s_cbranch_scc0 L_notlb")
        a("s_mov_b32 s52, s12"); a("s_mov_b32 s53, s13")
        for idn, p in ((3, 16), (4, 18), (5, 20), (6, 10)):
            a(f"s_cmp_eq_u32 s51, {idn}"); a(f"s_cselect_b32 s52, s{p}, s52"); a(f"s_cselect_b32 s53, s{p+1}, s53")
        a("s_branch L_tlbgo")
        a("L_tlbkv:")
        a("s_cmp_eq_u32 s51, 0"); a("s_cselect_b32 s52, s6, s8"); a("s_cselect_b32 s53, s7, s9")
        a("v_and_b32 v15, 1, v1"); a("s_lshl_b32 s54, s28, 1"); a("v_add_u32 v15, s54, v15"); a("v_lshlrev_b32 v15, 24, v15"); a(f"v_add_u32 v15, {61440*256}, v15")
        a("L_tlbgo:")
        a("s_mov_b64 exec, 7")
        a("global_load_dword v250, v15, s[52:53]")
        FULL()
        a("L_notlb:")
    a("s_mov_b32 s71, 0")
    if cfg.prefetch_code and not cfg.pf_top:
        a("s_cmp_eq_u32 s29, 31"); a("s_cbranch_scc0 L_nopf")
        a("s_cmp_eq_u32 s49, 3"); a("s_cbranch_scc0 L_nopf")
        a("s_mov_b32 s71, 1")
        a("s_getpc_b64 s[52:53]")
        a("s_and_b32 s52, s52, 0xffffff00")
        a("v_lshlrev_b32 v15, 4, v1")
        a("s_mov_b32 s51, CODE_KB")
        a("L_pfl:")
        a("global_load_dwordx4 v[252:255], v15, s[52:53]")
        a("v_add_u32 v15, 1024, v15")
        a("s_sub_u32 s51, s51, 1"); a("s_cmp_lg_u32 s51, 0"); a("s_cbranch_scc1 L_pfl")
        a("L_nopf:")
    a("s_barrier")
    if cfg.loader_only:
        arrive(F_KFREE); arrive(F_VFREE); a("s_branch L_fin")
    srd(32, 26, W_SIZE + (0x100000 if cfg.debug else 0)); srd(40, 22, 1152)
    a("v_lshrrev_b32 v28, 2, v2"); a("v_and_b32 v29, 3, v2")
    a("v_and_b32 v30, 1, v3"); a("v_lshrrev_b32 v31, 1, v3")
    a("v_lshl_add_u32 v32, v30, 2, v28")
    a("v_lshrrev_b32 v33, 1, v32")
    a("v_xor_b32 v33, s49, v33"); a("v_lshlrev_b32 v33, 5, v33")
    a("v_lshl_add_u32 v33, v29, 3, v33")
    a("v_lshl_add_u32 v33, v32, 7, v33")
    a("v_lshl_add_u32 v7, v31, 10, v33")
    a("v_lshl_add_u32 v33, v3, 2, v28")
    a("s_lshl_b32 s51, s49, 1"); a("v_xor_b32 v34, s51, v32"); a("v_lshlrev_b32 v34, 5, v34")
    a("v_lshl_add_u32 v34, v29, 3, v34"); a("v_lshl_add_u32 v34, v33, 8, v34")
    a(f"v_add_u32 v8, {L_V}, v34"); a("v_xor_b32 v34, 32, v34"); a(f"v_add_u32 v9, {L_V}, v34")
    a("v_xor_b32 v33, v3, v2"); a("v_lshlrev_b32 v33, 4, v33"); a("v_lshl_add_u32 v33, v2, 8, v33")
    a("s_lshl_b32 s51, s49, 14"); a(f"s_add_u32 s51, s51, {L_K}")
    for c in range(4):
        if c: a(f"v_xor_b32 v34, {64*c}, v33"); a(f"v_add_u32 v{10+c}, s51, v34")
        else: a("v_add_u32 v10, s51, v33")
    a(f"v_add_u32 v50, {O_LN1}, v14"); a("v_add_u32 v50, v50, v4")
    a("s_lshr_b32 s51, s31, 2"); a("s_mul_i32 s51, s51, 288"); a(f"s_add_u32 s51, s51, {L_SCR+O_LN1}")
    a("v_lshl_add_u32 v51, v3, 3, s51")
    a("v_and_b32 v33, 1, v2")
    a("v_lshlrev_b32 v34, 8, v33"); a("v_lshl_add_u32 v34, v3, 4, v34"); a("v_add_u32 v52, v34, v4")
    a("v_lshl_add_u32 v53, v33, 4, v4"); a("s_lshl_b32 s51, s49, 2"); a("v_add_u32 v54, s51, v53")
    a("v_lshl_add_u32 v55, v3, 5, v53"); a("s_lshl_b32 s51, s49, 8"); a("v_add_u32 v56, s51, v55")
    a("s_lshl_b32 s65, s30, 2"); a("s_lshr_b32 s52, s31, 2"); a("s_add_u32 s65, s65, s52"); a("s_lshl_b32 s65, s65, 10")
    a("s_and_b32 s52, s31, 3"); a("s_lshl_b32 s52, s52, 8"); a("s_add_u32 s65, s65, s52")
    a("s_lshl_b32 s52, s49, 6"); a("s_add_u32 s65, s65, s52"); a(f"s_add_u32 s65, s65, {W_A}")
    a("v_lshlrev_b32 v57, 4, v3")
    a("s_lshl_b32 s66, s30, 14"); a("s_lshl_b32 s52, s31, 9"); a("s_add_u32 s66, s66, s52")
    a("s_lshl_b32 s52, s49, 7"); a("s_add_u32 s66, s66, s52"); a(f"s_add_u32 s66, s66, {W_B}")
    a("v_and_b32 v58, 1, v2"); a("v_lshlrev_b32 v58, 13, v58"); a("v_bfe_u32 v33, v2, 1, 1"); a("v_lshl_add_u32 v58, v33, 6, v58"); a("v_lshl_add_u32 v58, v3, 4, v58")
    a("s_lshl_b32 s67, s30, 12"); a("s_lshl_b32 s52, s31, 7"); a("s_add_u32 s67, s67, s52"); a(f"s_add_u32 s67, s67, {W_ML}")
    a("v_and_b32 v59, 1, v2"); a("v_lshlrev_b32 v59, 11, v59"); a("v_lshrrev_b32 v33, 1, v2"); a("v_lshl_add_u32 v59, v33, 4, v59")
    a("s_lshl_b32 s68, s30, 12"); a(f"s_add_u32 s68, s68, {W_A}")
    a("s_lshl_b32 s69, s49, 4"); a("s_add_u32 s69, s69, 34")
    a("v_mov_b32 v44, 0"); a("v_mov_b32 v45, 0")
    a("s_waitcnt lgkmcnt(0)")
    a(f"s_add_u32 s48, s48, {TAG_INC}")
    a("v_mov_b32 v6, s48")
    if cfg.use_local:
        a("s_getreg_b32 s44, hwreg(HW_REG_XCC_ID, 0, 4)")
        a("s_lshl_b32 s51, s28, 12"); a(f"s_add_u32 s70, s51, {W_X}")
        a("v_and_b32 v232, 31, v1"); a("v_lshlrev_b32 v232, 7, v232"); a("v_mov_b32 v89, 0")
        a("s_cmp_eq_u32 s49, 2"); a("s_cbranch_scc0 L_nox")
        a("s_lshl_b32 s51, s29, 7"); a("s_add_u32 s51, s51, s70")
        a("v_mov_b32 v60, s44"); a("v_mov_b32 v61, 0"); a("v_mov_b32 v62, 0"); a("v_mov_b32 v63, v6")
        a("s_mov_b64 exec, 1")
        a("buffer_store_dwordx4 v[60:63], v89, s[32:35], s51 offen sc1")
        FULL()
        a("s_waitcnt vmcnt(1)"); a("s_branch L_xw1")
        a("L_nox:")
    a("s_cmp_eq_u32 s71, 0"); a("s_cbranch_scc1 L_xw0")
    a("s_waitcnt vmcnt(CODE_KB)"); a("s_branch L_xw1")
    a("L_xw0:"); a("s_waitcnt vmcnt(0)"); a("L_xw1:")
    stamp(1)
    if cfg.pretouch:
        a("s_cmp_eq_u32 s49, 1"); a("s_cbranch_scc0 L_nopt")
        a("v_lshlrev_b32 v33, 6, v1")
        a("buffer_load_dword v244, v33, s[32:35], s68 offen sc1")
        a("L_nopt:")
    a("v_lshlrev_b32 v28, 16, v20")
    a("v_and_b32 v29, 0xffff0000, v20")
    a("v_readfirstlane_b32 s52, v28")
    for k in range(1, 8):
        a(f"v_lshlrev_b32 v{28+2*k}, 16, v{20+k}"); a(f"v_and_b32 v{29+2*k}, 0xffff0000, v{20+k}")
    a("s_mov_b32 exec_hi, 15")
    for k in range(8): a(f"v_pk_add_f32 v[{64+2*k}:{65+2*k}], v[{28+2*k}:{29+2*k}], s[52:53] op_sel_hi:[1,0] neg_lo:[0,1] neg_hi:[0,1]")
    a("v_pk_mul_f32 v[46:47], v[64:65], v[64:65]")
    for k in range(1, 8): a(f"v_pk_fma_f32 v[46:47], v[{64+2*k}:{65+2*k}], v[{64+2*k}:{65+2*k}], v[46:47]")
    for k in range(4): a(f"v_pk_add_f32 v[{64+2*k}:{65+2*k}], v[{64+2*k}:{65+2*k}], v[{72+2*k}:{73+2*k}]")
    a("v_pk_add_f32 v[64:65], v[64:65], v[66:67]"); a("v_pk_add_f32 v[68:69], v[68:69], v[70:71]"); a("v_pk_add_f32 v[64:65], v[64:65], v[68:69]")
    a("v_add_f32 v44, v64, v65"); a("v_add_f32 v45, v46, v47")
    FULL()
    red2("v_add_f32", 44, 45, 46, 47)
    a("v_mul_f32 v44, 0x3ae38e39, v44"); a("v_mul_f32 v45, 0x3ae38e39, v45")
    a("v_fma_f32 v45, -v44, v44, v45"); a("v_add_f32 v44, s52, v44")
    ln_final(44, 45, 46)
    for k in range(8): a(f"v_pk_add_f32 v[{28+2*k}:{29+2*k}], v[{28+2*k}:{29+2*k}], v[44:45] op_sel_hi:[1,0] neg_lo:[0,1] neg_hi:[0,1]")
    for k in range(8): a(f"v_cvt_pk_bf16_f32 v{20+k}, v{28+2*k}, v{29+2*k}")
    for k in range(8):
        a(f"v_lshlrev_b32 v{28+2*k}, 16, v{20+k}"); a(f"v_and_b32 v{29+2*k}, 0xffff0000, v{20+k}")
    for k in range(8): a(f"v_pk_mul_f32 v[{28+2*k}:{29+2*k}], v[{28+2*k}:{29+2*k}], v[44:45] op_sel:[0,1] op_sel_hi:[1,1]")
    for k in range(8): a(f"v_cvt_pk_bf16_f32 v{20+k}, v{28+2*k}, v{29+2*k}")
    a("s_mov_b32 exec_hi, 15")
    a("ds_write_b128 v50, v[20:23]"); a("ds_write_b128 v50, v[24:27] offset:16")
    FULL()
    stamp(2)
    for r in range(4): a(f"v_mov_b32 v{60+r}, 0")
    wait_prog_s(18)
    for t in range(9):
        a(f"ds_read_b64 v[{20+2*t}:{21+2*t}], v51 offset:{32*t}")
        a(f"ds_read_b64_tr_b16 v[{64+2*t}:{65+2*t}], v7 offset:{L_WQ + 2048*t}")
    for t in range(9):
        if t in (0, 3, 6): a(f"s_waitcnt lgkmcnt({min(15, 2*(6-t))})")
        a(f"v_mfma_f32_16x16x16_bf16 v[60:63], v[{64+2*t}:{65+2*t}], v[{20+2*t}:{21+2*t}], v[60:63]")
    pack_gran(224, 60)
    J0()
    QST = "buffer_store_dwordx4 v[224:227], v57, s[32:35], s65 offen"
    if not cfg.nopub: a(QST if (cfg.use_local or "A" in cfg.force_local) else QST + " sc1")
    FULL()
    a("s_mov_b32 s45, 0")
    if cfg.use_local:
        a("s_cmp_eq_u32 s49, 2"); a("s_cbranch_scc0 L_nox2")
        a("buffer_load_dwordx4 v[228:231], v232, s[32:35], s70 offen sc1")
        a("L_nox2:")
    def restore_q():
        J0(); a(QST + " sc1"); FULL()
    def loc_check(vreg):
        L = a.label("Lc")
        a(f"v_readfirstlane_b32 s52, v{vreg}")
        a("s_cmp_lg_u32 s45, 0"); a(f"s_cbranch_scc1 {L}")
        a("s_mov_b32 s45, s52")
        a("s_cmp_eq_u32 s52, 2"); a(f"s_cbranch_scc0 {L}")
        restore_q()
        a(f"{L}:")
    stamp(3)
    wait_prog_s("s69")
    for t in range(4):
        for c in range(4):
            a(f"ds_read_b128 v[{64+16*t+4*c}:{67+16*t+4*c}], v{10+c} offset:{4096*t}")
    a("s_waitcnt lgkmcnt(0)")
    arrive(F_KFREE)
    if cfg.use_local:
        a("s_cmp_eq_u32 s49, 2"); a("s_cbranch_scc0 L_nox3")
        L = a.label("Lx"); a(f"{L}:")
        a("s_waitcnt vmcnt(0)")
        a("v_cmp_ne_u32 vcc, v231, v6"); a(f"s_cbranch_vccz {L}d")
        a("buffer_load_dwordx4 v[228:231], v232, s[32:35], s70 offen sc1")
        spin_tail(L)
        a(f"{L}d:")
        a("v_cmp_ne_u32 vcc, s44, v228"); a("v_cmp_ne_u32 s[56:57], v231, v6"); a("s_or_b64 vcc, vcc, s[56:57]")
        a("s_cmp_eq_u64 vcc, 0"); a("s_cselect_b32 s51, 1, 2")
        a("v_mov_b32 v228, s51")
        a("s_mov_b64 exec, 1")
        a(f"ds_write_b32 v4, v228 offset:{F_LOC}")
        FULL()
        a("L_nox3:")
    a("s_cmp_eq_u32 s49, 0"); a("s_cbranch_scc0 L_noq")
    a("v_lshlrev_b32 v14, 4, v1"); a("v_lshlrev_b32 v19, 3, v1"); a("v_add_u32 v19, v19, v4")
    L = a.label("Lg"); a(f"{L}:")
    if cfg.qsleep: a(f"s_sleep {cfg.qsleep}")
    if not cfg.nogather:
        for kp in range(4): a(f"buffer_load_dwordx4 v[{20+4*kp}:{23+4*kp}], v14, s[32:35], s68 offen offset:{1024*kp} sc1")
    if cfg.use_local: a(f"ds_read_b32 v37, v4 offset:{F_LOC}")
    a("s_waitcnt vmcnt(0) lgkmcnt(0)")
    if not cfg.noqcheck:
        chk([20, 24, 28, 32], 36)
        a(f"s_cbranch_vccz {L}d")
        if cfg.use_local: loc_check(37)
        spin_tail(L)
        a(f"{L}d:")
    for kp in range(4): unpack_b(40+kp, 20+4*kp)
    a("v_pk_add_f32 v[20:21], v[20:21], v[24:25]"); a("v_pk_add_f32 v[28:29], v[28:29], v[32:33]"); a("v_pk_add_f32 v[20:21], v[20:21], v[28:29]")
    a("v_pk_add_f32 v[40:41], v[40:41], v[42:43]"); a("v_add_f32 v40, v40, v41")
    a("v_add_f32 v22, v22, v26"); a("v_add_f32 v30, v30, v34"); a("v_add_f32 v22, v22, v30")
    a("v_cvt_pk_bf16_f32 v48, v20, v40"); a("v_cvt_pk_bf16_f32 v49, v21, v22")
    a(f"ds_write_b64 v19, v[48:49] offset:{O_Q}")
    arrive(F_QRDY)
    a("L_noq:")
    if cfg.use_local:
        L = a.label("Lq"); a(f"{L}:")
        a(f"ds_read_b64 v[36:37], v4 offset:{F_QRDY}"); a("s_waitcnt lgkmcnt(0)")
        loc_check(37)
        a("v_readfirstlane_b32 s51, v36"); a("s_cmp_ge_i32 s51, 1"); a(f"s_cbranch_scc1 {L}d")
        spin_tail(L)
        a(f"{L}d:")
    for r in range(16): a(f"v_mov_b32 v{144+r}, 0")
    if not cfg.use_local: wait_flag(F_QRDY, 1)
    stamp(4)
    for c in range(4): a(f"ds_read_b128 v[{128+4*c}:{131+4*c}], v52 offset:{O_Q + 64*c}")
    a(f"s_mov_b32 s52, {SCALE:#x}"); a(f"s_mov_b32 s54, {LOG2E:#x}")
    for c in range(4):
        a(f"s_waitcnt lgkmcnt({3-c})")
        for t in range(4):
            a(f"v_mfma_f32_16x16x32_bf16 v[{144+4*t}:{147+4*t}], v[{64+16*t+4*c}:{67+16*t+4*c}], v[{128+4*c}:{131+4*c}], v[{144+4*t}:{147+4*t}]")
    for k in range(8): a(f"v_cvt_pk_bf16_f32 v{20+k}, v{144+2*k}, v{145+2*k}")
    for k in range(8):
        a(f"v_lshlrev_b32 v{144+2*k}, 16, v{20+k}"); a(f"v_and_b32 v{145+2*k}, 0xffff0000, v{20+k}")
    for k in range(8): a(f"v_pk_mul_f32 v[{144+2*k}:{145+2*k}], v[{144+2*k}:{145+2*k}], s[52:53] op_sel_hi:[1,0]")
    for k in range(8): a(f"v_cvt_pk_bf16_f32 v{20+k}, v{144+2*k}, v{145+2*k}")
    for k in range(8):
        a(f"v_lshlrev_b32 v{144+2*k}, 16, v{20+k}"); a(f"v_and_b32 v{145+2*k}, 0xffff0000, v{20+k}")
    a("v_max3_f32 v20, v144, v145, v146")
    for k in range(147, 159, 2): a(f"v_max3_f32 v20, v20, v{k}, v{k+1}")
    a("v_max_f32 v20, v20, v159")
    xrow_red("v_max_f32", 20, 21)
    a("s_mov_b64 exec, 3")
    a(f"ds_write_b32 v54, v20 offset:{O_MX}")
    a("s_mov_b64 exec, 1")
    a(f"ds_add_u32 v4, v5 offset:{F_MAXR}")
    FULL()
    wait_flag(F_MAXR, 4)
    a(f"ds_read_b128 v[24:27], v53 offset:{O_MX}")
    a("s_waitcnt lgkmcnt(0)")
    a("v_max3_f32 v23, v24, v25, v26"); a("v_max_f32 v22, v23, v27"); a("v_max_f32 v23, v23, v27")
    for k in range(8): a(f"v_pk_add_f32 v[{144+2*k}:{145+2*k}], v[{144+2*k}:{145+2*k}], v[22:23] neg_lo:[0,1] neg_hi:[0,1]")
    for k in range(8): a(f"v_pk_mul_f32 v[{144+2*k}:{145+2*k}], v[{144+2*k}:{145+2*k}], s[54:55] op_sel_hi:[1,0]")
    for k in range(16): a(f"v_exp_f32 v{144+k}, v{144+k}")
    for k in range(8): a(f"v_cvt_pk_bf16_f32 v{24+k}, v{144+2*k}, v{145+2*k}")
    J01()
    a(f"ds_write_b128 v56, v[24:27] offset:{O_P}"); a(f"ds_write_b128 v56, v[28:31] offset:{O_P+128}")
    FULL()
    for k in range(4): a(f"v_pk_add_f32 v[{144+2*k}:{145+2*k}], v[{144+2*k}:{145+2*k}], v[{152+2*k}:{153+2*k}]")
    a("v_pk_add_f32 v[144:145], v[144:145], v[146:147]"); a("v_pk_add_f32 v[148:149], v[148:149], v[150:151]"); a("v_pk_add_f32 v[144:145], v[144:145], v[148:149]")
    a("v_add_f32 v20, v144, v145")
    xrow_red("v_add_f32", 20, 21)
    a("s_mov_b64 exec, 3")
    a(f"ds_write_b32 v54, v20 offset:{O_LS}")
    a("s_mov_b64 exec, 1")
    a(f"ds_add_u32 v4, v5 offset:{F_PRDY}")
    FULL()
    for r in range(8): a(f"v_mov_b32 v{112+r}, 0")
    wait_flag(F_PRDY, 4)
    stamp(5)
    if cfg.use_local:
        L = a.label("Lq"); a(f"{L}:")
        a("s_cmp_lg_u32 s45, 0"); a(f"s_cbranch_scc1 {L}d")
        a(f"ds_read_b32 v37, v4 offset:{F_LOC}"); a("s_waitcnt lgkmcnt(0)")
        loc_check(37)
        spin_tail(L)
        a(f"{L}d:")
    for u in range(8): a(f"ds_read_b128 v[{64+4*u}:{67+4*u}], v55 offset:{O_P + 128*u}")
    a(f"ds_read_b128 v[24:27], v53 offset:{O_LS}")
    a("v_mov_b32 v123, v6"); a("v_mov_b32 v30, 0"); a("v_mov_b32 v31, v6"); a("v_mov_b32 v28, v23")
    a("s_waitcnt lgkmcnt(0)")
    a("v_pk_add_f32 v[24:25], v[24:25], v[26:27]"); a("v_add_f32 v29, v24, v25")
    for grp in ([] if cfg.nopv else cfg.pvgroups):
        wait_prog_s(82 + 8*(grp[-1]+1))
        for u in grp:
            fb = 160 + 8*u
            a(f"ds_read_b64_tr_b16 v[{fb}:{fb+1}], v8 offset:{8192*u}")
            a(f"ds_read_b64_tr_b16 v[{fb+2}:{fb+3}], v8 offset:{8192*u+4096}")
            a(f"ds_read_b64_tr_b16 v[{fb+4}:{fb+5}], v9 offset:{8192*u}")
            a(f"ds_read_b64_tr_b16 v[{fb+6}:{fb+7}], v9 offset:{8192*u+4096}")
        n = 4*len(grp)
        for k, u in enumerate(grp):
            fb = 160 + 8*u
            a(f"s_waitcnt lgkmcnt({min(15, n - 4*k - 2)})")
            a(f"v_mfma_f32_16x16x32_bf16 v[112:115], v[{fb}:{fb+3}], v[{64+4*u}:{67+4*u}], v[112:115]")
            a(f"s_waitcnt lgkmcnt({min(15, n - 4*k - 4)})")
            a(f"v_mfma_f32_16x16x32_bf16 v[116:119], v[{fb+4}:{fb+7}], v[{64+4*u}:{67+4*u}], v[116:119]")
    a("s_mov_b32 s52, 0xcccccccc"); a("s_mov_b32 s53, 0xcccccccc")
    for r in range(4): a(f"v_cndmask_b32 v{112+r}, v{112+r}, v{116+r}, s[52:53]")
    a("s_mov_b32 exec_lo, 0x000f000f"); a("s_mov_b32 exec_hi, 0x000f000f")
    a("v_perm_b32 v120, v112, v113, s60"); a("v_perm_b32 v121, v114, v113, s61"); a("v_perm_b32 v122, v115, v113, s62")
    if not cfg.nopub2: lstore("buffer_store_dwordx4 v[120:123], v58, s[32:35], s66 offen", "B")
    a("s_cmp_eq_u32 s49, 0"); a("s_cbranch_scc0 L_noml")
    a("s_mov_b64 exec, 0xffff")
    if not cfg.nopub2: lstore("buffer_store_dwordx4 v[28:31], v59, s[32:35], s67 offen", "B")
    a("L_noml:")
    FULL()
    arrive(F_VFREE)
    stamp(6)
    if cfg.ackstamp:
        a("s_waitcnt vmcnt(0)"); stamp(2)
    if cfg.stop_after == "attn": a("s_branch L_fin")
    a("s_cmp_lt_u32 s29, 18"); a("s_cbranch_scc1 L_F")
    a("s_cmp_lt_u32 s29, 27"); a("s_cbranch_scc1 L_S")

    a("s_cmp_eq_u32 s49, 0"); a("s_cbranch_scc0 L_fin")
    a("s_mul_i32 s65, s28, 5"); a("s_add_u32 s65, s65, s29"); a("s_sub_u32 s65, s65, 27")
    a("s_cmp_lt_u32 s65, 36"); a("s_cbranch_scc0 L_fin")
    a("v_bfe_u32 v14, v1, 2, 3"); a("v_mul_u32_u24 v14, 2304, v14"); a("v_and_b32 v15, 3, v1"); a("v_lshl_add_u32 v14, v15, 4, v14")
    a("s_lshl_b32 s66, s65, 6"); a(f"s_add_u32 s66, s66, {W_C}")
    L = a.label("Lg"); a(f"{L}:")
    a("s_sleep 4")
    a("buffer_load_dwordx4 v[20:23], v14, s[32:35], s66 offen sc1")
    a("s_waitcnt vmcnt(0)")
    tagcheck([20], 36, L)
    unpack_b(24, 20)
    a("v_mov_b32 v25, v21"); a("v_mov_b32 v26, v22"); a("v_mov_b32 v23, v20")
    for s_ in (4, 8):
        for r in range(4): a(f"v_add_f32_dpp v{23+r}, v{23+r}, v{23+r} row_ror:{s_} {DPP}")
    for r in range(4): a(f"v_mov_b32 v{40+r}, v{23+r}")
    for r in range(4): a(f"v_permlane16_swap_b32 v{23+r}, v{40+r}")
    for r in range(4): a(f"v_add_f32 v{23+r}, v{23+r}, v{40+r}")
    rnd2(23, 24, 36); rnd2(25, 26, 36)
    a("v_lshlrev_b32 v28, 16, v16"); a("v_and_b32 v29, 0xffff0000, v16"); a("v_lshlrev_b32 v30, 16, v17"); a("v_and_b32 v31, 0xffff0000, v17")
    for r in range(4): a(f"v_add_f32 v{28+r}, v{28+r}, v{23+r}")
    rnd2(28, 29, 36); rnd2(30, 31, 36)
    stamp(7)
    a("v_lshlrev_b32 v14, 4, v1")
    a("s_mul_i32 s66, s65, 9216"); a(f"s_add_u32 s66, s66, {W_D}"); a("s_add_u32 s67, s66, 4096"); a("s_add_u32 s68, s66, 8192")
    a("s_lshl_b32 s69, s65, 5"); a("v_and_b32 v19, 3, v1"); a("v_lshlrev_b32 v19, 3, v19"); a("v_mov_b32 v18, 0")
    if cfg.hintD:
        a("v_and_b32 v39, 7, v1"); a("v_lshlrev_b32 v39, 7, v39"); a(f"s_mov_b32 s59, {W_H + 0x400}")
        wait_notice(0x400, 240)
    def rolling(nsets, nloads, emit, check, tail, pre=None, between=None):
        L = a.label("Lr")
        for k in range(nsets):
            emit(k)
            if k == 0 and between: between()
        a(f"{L}:")
        for k in range(nsets):
            if cfg.debug: a("s_add_u32 s46, s46, 1")
            if pre: pre(k)
            a(f"s_waitcnt vmcnt({(nsets-1)*nloads})")
            check(k)
            a(f"s_cbranch_vccz {L}s{k}")
            emit(k)
        spin_tail(L)
        for k in range(nsets):
            a(f"{L}s{k}:")
            tail(k)
            if k < nsets - 1: a(f"s_branch {L}j")
        a(f"{L}j:")
    ZS = [64, 100, 136][:cfg.zsets]
    def z_emit(k):
        for i9 in range(9):
            q = ZS[k] + 4*i9
            a(f"buffer_load_dwordx4 v[{q}:{q+3}], v14, s[32:35], s{66+i9//4} offen offset:{1024*(i9%4)} sc1")
    def z_tail(k):
        b = ZS[k]
        stamp(8)
        for q in range(9): unpack_b(40+q, b+4*q)
        for q in range(1, 9): a(f"v_pk_add_f32 v[{b}:{b+1}], v[{b}:{b+1}], v[{b+4*q}:{b+4*q+1}]")
        for q in range(3): a(f"v_pk_add_f32 v[40:41], v[40:41], v[{42+2*q}:{43+2*q}]")
        a("v_add_f32 v33, v40, v41"); a("v_add_f32 v33, v33, v48")
        a(f"v_add_f32 v35, v{b+2}, v{b+6}")
        for q in range(2, 9): a(f"v_add_f32 v35, v35, v{b+2+4*q}")
        a(f"v_mov_b32 v32, v{b}"); a(f"v_mov_b32 v34, v{b+1}")
    rolling(len(ZS), 9, z_emit, lambda k: chk([ZS[k]+4*q for q in range(9)], 36), z_tail)
    for s_ in (4, 8):
        for r in range(4): a(f"v_add_f32_dpp v{32+r}, v{32+r}, v{32+r} row_ror:{s_} {DPP}")
    for sw in ("v_permlane16_swap_b32", "v_permlane32_swap_b32"):
        for r in range(4): a(f"v_mov_b32 v{40+r}, v{32+r}")
        for r in range(4): a(f"{sw} v{32+r}, v{40+r}")
        for r in range(0, 4, 2): a(f"v_pk_add_f32 v[{32+r}:{33+r}], v[{32+r}:{33+r}], v[{40+r}:{41+r}]")
    rnd2(32, 33, 36); rnd2(34, 35, 37)
    a("v_pk_add_f32 v[32:33], v[32:33], v[28:29]"); a("v_pk_add_f32 v[34:35], v[34:35], v[30:31]")
    a("v_cvt_pk_bf16_f32 v36, v32, v33"); a("v_cvt_pk_bf16_f32 v37, v34, v35")
    a("s_mov_b64 exec, 15")
    a("buffer_store_dwordx2 v[36:37], v19, s[40:43], s69 offen")
    a("s_cmp_eq_u32 s65, 0"); a("s_cbranch_scc0 L_noep")
    a("s_mov_b64 exec, 1")
    a(f"buffer_store_dword v6, v18, s[32:35], 0 offen offset:{W_EPOCH} sc1")
    a("L_noep:")
    FULL()
    stamp(9)
    a("s_branch L_fin")

    a("L_S:")
    a("v_lshrrev_b32 v32, 2, v2"); a("v_and_b32 v33, 3, v2")
    a("v_lshrrev_b32 v34, 1, v32"); a("v_and_b32 v35, 1, v3"); a("v_lshl_or_b32 v34, v35, 1, v34")
    a("v_lshlrev_b32 v34, 5, v34"); a("v_lshl_add_u32 v34, v33, 3, v34"); a("v_lshl_add_u32 v34, v32, 7, v34"); a("v_lshl_add_u32 v34, v3, 11, v34")
    a("s_lshl_b32 s51, s49, 14"); a("v_add_u32 v28, s51, v34")
    for T in range(1, 4): a(f"v_xor_b32 v{28+T}, {32*T}, v28")
    a("s_lshl_b32 s65, s28, 2"); a("s_add_u32 s65, s65, s49")
    a("s_lshl_b32 s66, s65, 13"); a(f"s_add_u32 s66, s66, {W_B}")
    a("s_lshl_b32 s68, s65, 11"); a(f"s_add_u32 s68, s68, {W_ML}")
    a("v_bfe_u32 v14, v1, 2, 2"); a("v_lshlrev_b32 v14, 11, v14"); a("v_lshl_add_u32 v14, v3, 6, v14"); a("v_and_b32 v35, 3, v1"); a("v_lshl_add_u32 v14, v35, 4, v14")
    a("v_lshlrev_b32 v41, 7, v2")
    a("v_lshlrev_b32 v18, 4, v2")
    a("s_lshl_b32 s51, s49, 8"); a("v_lshl_add_u32 v19, v3, 4, s51"); a("v_add_u32 v19, v19, v4")
    a("v_add_u32 v40, v18, v4")
    a("s_mul_i32 s69, s28, 2304"); a("s_sub_u32 s52, s29, 18"); a("s_lshl_b32 s52, s52, 8"); a("s_add_u32 s69, s69, s52"); a(f"s_add_u32 s69, s69, {W_C}")
    a(f"s_mov_b32 s54, {LOG2E:#x}")
    for r in range(16): a(f"v_mov_b32 v{192+r}, 0")
    a("v_mov_b32 v211, v6"); a("v_lshlrev_b32 v38, 4, v1")
    wait_prog_s(210)
    for T in range(4):
        for ks in range(4):
            b = 64 + 16*T + 4*ks
            off = L_WQ + 8192*(ks >> 1) + 1024*(ks & 1)
            a(f"ds_read_b64_tr_b16 v[{b}:{b+1}], v{28+T} offset:{off}")
            a(f"ds_read_b64_tr_b16 v[{b+2}:{b+3}], v{28+T} offset:{off + 512}")
    stamp(7)
    SS = [128, 212][:cfg.ssets]
    def s_emit(k):
        b0 = SS[k]
        a(f"buffer_load_dwordx4 v[{b0}:{b0+3}], v41, s[32:35], s68 offen sc1")
        for b in range(2):
            for i4 in range(4):
                q = b0 + 4 + 16*b + 4*i4
                a(f"buffer_load_dwordx4 v[{q}:{q+3}], v14, s[32:35], s66 offen offset:{512*i4 + 256*b} sc1")
    def s_pre(k):
        b0 = SS[k]
        a(f"s_waitcnt vmcnt({(len(SS)-1)*9 + 8})")
        a(f"v_mov_b32 v32, v{b0}")
        row_red("v_max_f32", 32)
        a(f"v_sub_f32 v33, v{b0}, v32"); a("v_mul_f32 v33, s54, v33"); a("v_exp_f32 v33, v33")
        a(f"v_mul_f32 v34, v33, v{b0+1}")
        row_red("v_add_f32", 34)
        a("v_rcp_f32 v34, v34"); a("v_mul_f32 v33, v33, v34")
    def s_tail(k):
        b0 = SS[k]
        stamp(8)
        if cfg.hintC: notice(18, 208, 0)
        for q in range(8): unpack_b(164+q, b0+4+4*q)
        for i4 in range(4):
            for b in range(2):
                q = b0 + 4 + 16*b + 4*i4
                srcs = [q, 164+4*b+i4, q+1, q+2]
                for r in range(4):
                    op = "v_mul_f32_dpp" if i4 == 0 else "v_fmac_f32_dpp"
                    a(f"{op} v{172+4*b+r}, v33, v{srcs[r]} quad_perm:[{i4},{i4},{i4},{i4}] {DPP}")
    rolling(len(SS), 9, s_emit, lambda k: chk([SS[k]] + [SS[k]+4+4*q for q in range(8)], 32), s_tail, s_pre)
    for s_ in (4, 8):
        for r in range(8): a(f"v_add_f32_dpp v{172+r}, v{172+r}, v{172+r} row_ror:{s_} {DPP}")
    for b in range(2):
        a(f"v_cvt_pk_bf16_f32 v{180+2*b}, v{172+4*b}, v{173+4*b}"); a(f"v_cvt_pk_bf16_f32 v{181+2*b}, v{174+4*b}, v{175+4*b}")
    a("s_waitcnt lgkmcnt(0)")
    BR = [184, 188, 164, 168]
    def bc(ks):
        b, v = ks >> 1, ks & 1
        o = []
        for hh in range(2):
            o.append(f"v_mov_b32_dpp v{BR[ks]+2*hh}, v{180+2*b} row_newbcast:{2*v+hh} {DPP}")
            o.append(f"v_mov_b32_dpp v{BR[ks]+2*hh+1}, v{181+2*b} row_newbcast:{2*v+hh} {DPP}")
        return o
    for x in bc(0): a(x)
    for ks in range(4):
        nxt = bc(ks+1) if ks < 3 else []
        for T in range(4):
            A_ = 64 + 16*T + 4*ks
            a(f"v_mfma_f32_16x16x32_bf16 v[{192+4*T}:{195+4*T}], v[{A_}:{A_+3}], v[{BR[ks]}:{BR[ks]+3}], v[{192+4*T}:{195+4*T}]")
            if nxt: a(nxt[T])
    J0()
    for T in range(4): a(f"ds_write_b128 v19, v[{192+4*T}:{195+4*T}] offset:{O_RED + 64*T}")
    a("s_waitcnt lgkmcnt(0)")
    FULL()
    a("s_barrier")
    a("s_cmp_eq_u32 s49, 0"); a("s_cbranch_scc0 L_fin")
    for w in range(4): a(f"ds_read_b128 v[{64+4*w}:{67+4*w}], v40 offset:{O_RED + 256*w}")
    a("s_waitcnt lgkmcnt(0)")
    a("v_pk_add_f32 v[64:65], v[64:65], v[68:69]"); a("v_pk_add_f32 v[72:73], v[72:73], v[76:77]")
    a("v_pk_add_f32 v[66:67], v[66:67], v[70:71]"); a("v_pk_add_f32 v[74:75], v[74:75], v[78:79]")
    a("v_pk_add_f32 v[64:65], v[64:65], v[72:73]"); a("v_pk_add_f32 v[66:67], v[66:67], v[74:75]")
    a("s_mov_b64 exec, 0xffff")
    a("v_perm_b32 v208, v64, v65, s60"); a("v_perm_b32 v209, v66, v65, s61"); a("v_perm_b32 v210, v67, v65, s62")
    a("buffer_store_dwordx4 v[208:211], v18, s[32:35], s69 offen sc1")
    FULL()
    stamp(9)
    a("s_branch L_fin")

    a("L_F:")
    a("s_and_b32 s65, s29, 1")
    a("s_lshr_b32 s66, s29, 1"); a("s_mul_i32 s67, s28, 9"); a("s_add_u32 s66, s66, s67")
    a(f"v_add_u32 v19, 36864, v7")
    a("v_lshlrev_b32 v40, 1, v18")
    a("v_lshrrev_b32 v14, 3, v18")
    a("v_lshrrev_b32 v34, 3, v14"); a("v_lshlrev_b32 v34, 6, v34")
    a("v_and_b32 v35, 3, v14"); a("v_lshl_add_u32 v34, v35, 4, v34")
    a("v_bfe_u32 v35, v14, 2, 1"); a("v_lshl_add_u32 v34, v35, 3, v34"); a("v_add_u32 v41, v34, v4")
    a("v_lshl_add_u32 v42, v3, 4, v4")
    a("s_lshl_b32 s51, s49, 3"); a("v_add_u32 v43, s51, v4")
    a("v_and_b32 v44, 1, v3"); a("v_lshlrev_b32 v44, 4, v44")
    a("v_and_b32 v62, 3, v2"); a("v_lshl_add_u32 v62, v62, 5, v44")
    a("v_and_b32 v45, 1, v3"); a("v_lshlrev_b32 v45, 3, v45"); a("v_and_b32 v38, 3, v2"); a("v_lshl_add_u32 v45, v38, 1, v45")
    a("s_lshl_b32 s51, s49, 4"); a("v_add_u32 v45, s51, v45"); a("v_add_u32 v45, v45, v4")
    a("v_mul_u32_u24 v46, 36864, v2"); a("v_lshl_add_u32 v46, v3, 4, v46")
    a("v_lshrrev_b32 v28, 2, v2"); a("v_and_b32 v29, 3, v2")
    a("v_lshrrev_b32 v30, 1, v28"); a("v_and_b32 v31, 1, v3"); a("v_lshlrev_b32 v31, 1, v31"); a("v_xor_b32 v30, v30, v31")
    a("v_xor_b32 v30, s49, v30"); a("v_lshlrev_b32 v30, 5, v30"); a("v_lshl_add_u32 v30, v29, 3, v30")
    a("v_lshl_add_u32 v30, v28, 7, v30"); a("v_lshl_add_u32 v30, v3, 10, v30")
    a(f"v_add_u32 v47, {L_V}, v30"); a("v_xor_b32 v30, 64, v30"); a(f"v_add_u32 v48, {L_V+512}, v30")
    a("v_lshlrev_b32 v50, 16, v16"); a("v_and_b32 v51, 0xffff0000, v16"); a("v_lshlrev_b32 v52, 16, v17"); a("v_and_b32 v53, 0xffff0000, v17")
    a("s_lshl_b32 s67, s66, 10"); a("s_lshl_b32 s68, s49, 7"); a("s_add_u32 s67, s67, s68"); a(f"s_add_u32 s67, s67, {W_E}")
    a("s_lshl_b32 s68, s65, 9"); a("s_add_u32 s69, s67, s68")
    a("s_xor_b32 s68, s68, 512"); a("s_add_u32 s70, s67, s68")
    a("s_mul_i32 s51, s28, 18"); a("s_add_u32 s51, s51, s29"); a("s_lshl_b32 s51, s51, 6")
    a("s_mul_i32 s52, s49, 9216"); a("s_add_u32 s51, s51, s52"); a(f"s_add_u32 s68, s51, {W_D}")
    a(f"s_mov_b32 s66, {W_C}"); a(f"s_mov_b32 s67, {W_C + 4*2304}")
    a("v_add_u32 v49, 6912, v40") if False else None
    a("v_mov_b32 v24, 0x3f803f80"); a("v_mov_b32 v25, v24"); a("v_mov_b32 v26, v24"); a("v_mov_b32 v27, v24")
    for r in range(4): a(f"v_mov_b32 v{20+r}, 0"); a(f"v_mov_b32 v{54+r}, 0")
    a("v_mov_b32 v60, 0"); a("v_mov_b32 v61, 0")
    a("v_add_u32 v49, 4608, v40")
    if cfg.pretouch: a("buffer_load_dwordx4 v[244:247], v44, s[32:35], s69 offen sc1")
    def mat_groups(g0, g1):
        for gi in range(g0, g1):
            wait_prog_s(146 + 12*(gi+1))
            for u in range(3*gi, 3*gi+3):
                base, off = (7, 4096*u) if u < 9 else (19, 4096*(u-9))
                a(f"ds_read_b64_tr_b16 v[{64+4*u}:{65+4*u}], v{base} offset:{L_WQ + off}")
                a(f"ds_read_b64_tr_b16 v[{66+4*u}:{67+4*u}], v{base} offset:{L_WQ + off + 2048}")
            for k, u in enumerate(range(3*gi, 3*gi+3)):
                a(f"s_waitcnt lgkmcnt({4 - 2*k})")
                a(f"v_mfma_f32_16x16x32_bf16 v[54:57], v[{64+4*u}:{67+4*u}], v[24:27], v[54:57]")
    mat_groups(0, cfg.cgrp)
    stamp(7)
    if cfg.hintC:
        a("s_cmp_eq_u32 s49, 0"); a("s_cbranch_scc0 L_nogo")
        if cfg.hscalar:
            a(f"s_add_u32 s52, s26, {W_H + 12}"); a("s_addc_u32 s53, s27, 0")
            L = a.label("Lh"); a(f"{L}:")
            if cfg.hsleep: a(f"s_sleep {cfg.hsleep}")
            for p in range(8): a(f"s_load_dword s{88+p}, s[52:53], {128*p} glc")
            a("s_waitcnt lgkmcnt(0)")
            a("s_xor_b32 s88, s88, s48")
            for p in range(1, 8): a(f"s_xor_b32 s{88+p}, s{88+p}, s48"); a(f"s_or_b32 s88, s88, s{88+p}")
            a("s_cmp_eq_u32 s88, 0"); a(f"s_cbranch_scc1 {L}d")
            spin_tail(L); a(f"{L}d:")
        else:
            a("v_and_b32 v39, 7, v1"); a("v_lshlrev_b32 v39, 7, v39"); a(f"s_mov_b32 s59, {W_H}")
            wait_notice(0, 240)
        arrive(F_GO)
        a("s_branch L_go")
        a("L_nogo:")
        wait_flag(F_GO, 1)
        a("L_go:")
    if cfg.cpoll:
        a("s_add_u32 s52, s26, %d" % (W_C + 12)); a("s_addc_u32 s53, s27, 0")
        a("s_mul_i32 s51, s49, 576"); a("s_add_u32 s52, s52, s51"); a("s_addc_u32 s53, s53, 0")
        L = a.label("Lp"); a(f"{L}:")
        for p in range(8): a(f"s_load_dword s{88+p}, s[52:53], {2304*p} glc")
        a("s_waitcnt lgkmcnt(0)")
        a("s_xor_b32 s88, s88, s48")
        for p in range(1, 8): a(f"s_xor_b32 s{88+p}, s{88+p}, s48"); a(f"s_or_b32 s88, s88, s{88+p}")
        a("s_cmp_eq_u32 s88, 0"); a(f"s_cbranch_scc1 {L}d")
        spin_tail(L); a(f"{L}d:")
    if cfg.cdelay:
        L = a.label("Lt"); a(f"{L}:")
        a("s_memrealtime s[52:53]"); a("s_waitcnt lgkmcnt(0)"); a("s_sub_u32 s52, s52, s72"); a(f"s_cmp_lt_i32 s52, {cfg.cdelay}"); a(f"s_cbranch_scc1 {L}")
    L = a.label("Lg"); a(f"{L}:")
    if cfg.debug: a("s_add_u32 s46, s46, 256")
    if cfg.csleep: a(f"s_sleep {cfg.csleep}")
    for p in range(8):
        vo = 40 if (p & 2) == 0 else 49
        a(f"buffer_load_dwordx4 v[{208+4*p}:{211+4*p}], v{vo}, s[32:35], s{66+p//4} offen offset:{2304*(p&1)} sc1")
    a("s_waitcnt vmcnt(0)")
    tagcheck([208+4*p for p in range(8)], 32, L)
    stamp(8)
    for p in range(8): unpack_b(136+p, 208+4*p)
    for p in range(1, 8): a(f"v_pk_add_f32 v[208:209], v[208:209], v[{208+4*p}:{209+4*p}]")
    for k in range(3): a(f"v_pk_add_f32 v[136:137], v[136:137], v[{138+2*k}:{139+2*k}]")
    a("v_add_f32 v33, v136, v137")
    a("v_add_f32 v35, v210, v214")
    for p in range(2, 8): a(f"v_add_f32 v35, v35, v{210+4*p}")
    a("v_cvt_pk_bf16_f32 v36, v208, v33"); a("v_cvt_pk_bf16_f32 v37, v209, v35")
    a("v_lshlrev_b32 v28, 16, v36"); a("v_and_b32 v29, 0xffff0000, v36"); a("v_lshlrev_b32 v30, 16, v37"); a("v_and_b32 v31, 0xffff0000, v37")
    a("v_pk_add_f32 v[28:29], v[28:29], v[50:51]"); a("v_pk_add_f32 v[30:31], v[30:31], v[52:53]")
    a("v_cvt_pk_bf16_f32 v36, v28, v29"); a("v_cvt_pk_bf16_f32 v37, v30, v31")
    a("s_mov_b32 exec_hi, 15")
    a(f"ds_write_b64 v41, v[36:37] offset:{O_LN2}")
    a("v_lshlrev_b32 v28, 16, v36"); a("v_and_b32 v29, 0xffff0000, v36"); a("v_lshlrev_b32 v30, 16, v37"); a("v_and_b32 v31, 0xffff0000, v37")
    a("v_readfirstlane_b32 s52, v28")
    a("v_pk_add_f32 v[28:29], v[28:29], s[52:53] op_sel_hi:[1,0] neg_lo:[0,1] neg_hi:[0,1]")
    a("v_pk_add_f32 v[30:31], v[30:31], s[52:53] op_sel_hi:[1,0] neg_lo:[0,1] neg_hi:[0,1]")
    a("v_pk_mul_f32 v[32:33], v[28:29], v[28:29]"); a("v_pk_fma_f32 v[32:33], v[30:31], v[30:31], v[32:33]")
    a("v_pk_add_f32 v[28:29], v[28:29], v[30:31]")
    a("v_add_f32 v60, v28, v29"); a("v_add_f32 v61, v32, v33")
    FULL()
    red2("v_add_f32", 60, 61, 32, 33)
    a("v_mul_f32 v32, 0x3be38e39, v60")
    a("v_fma_f32 v61, -v32, v60, v61")
    a("v_add_f32 v60, s52, v32")
    a("s_mov_b64 exec, 1")
    a(f"ds_write_b64 v43, v[60:61] offset:{O_STAT}")
    a(f"ds_add_u32 v4, v5 offset:{F_LN2}")
    FULL()
    mat_groups(cfg.cgrp, 6)
    wait_flag(F_LN2, 4)
    stamp(9)
    if cfg.hintD == "hrdy": a("v_lshlrev_b32 v38, 4, v1"); a("v_mov_b32 v243, v6"); notice(0, 240, 0x400)
    a(f"ds_read_b128 v[28:31], v4 offset:{O_STAT}"); a(f"ds_read_b128 v[32:35], v4 offset:{O_STAT+16}")
    for u in range(18): a(f"ds_read_b128 v[{136+4*u}:{139+4*u}], v42 offset:{O_LN2 + 64*u}")
    fin = ["v_add_f32 v36, v28, v30", "v_add_f32 v37, v32, v34", "v_add_f32 v36, v36, v37", "v_mul_f32 v36, 0x3e800000, v36",
           "v_sub_f32 v28, v28, v36", "v_sub_f32 v30, v30, v36", "v_sub_f32 v32, v32, v36", "v_sub_f32 v34, v34, v36",
           "v_mul_f32 v37, v28, v28", "v_fmac_f32 v37, v30, v30", "v_fmac_f32 v37, v32, v32", "v_fmac_f32 v37, v34, v34",
           "v_add_f32 v29, v29, v31", "v_add_f32 v33, v33, v35", "v_add_f32 v29, v29, v33",
           "v_fmac_f32 v29, 0x43100000, v37", "v_mul_f32 v37, 0x3ae38e39, v29", "v_max_f32 v37, 0, v37",
           "v_cvt_pk_bf16_f32 v38, v37, v36", "v_lshlrev_b32 v37, 16, v38", "v_and_b32 v36, 0xffff0000, v38",
           "v_add_f32 v37, 0x3727c5ac, v37", "v_cvt_pk_bf16_f32 v38, v37, v37", "v_lshlrev_b32 v37, 16, v38",
           "v_sqrt_f32 v37, v37", "v_nop", "v_cvt_pk_bf16_f32 v38, v37, v37", "v_lshlrev_b32 v37, 16, v38", "v_rcp_f32 v37, v37"]
    for u in range(18):
        if u % 2 == 0 or u == 17: a(f"s_waitcnt lgkmcnt({min(15, max(0, 16 - u))})")
        a(f"v_mfma_f32_16x16x32_bf16 v[20:23], v[{64+4*u}:{67+4*u}], v[{136+4*u}:{139+4*u}], v[20:23]")
        for _ in range(2):
            if fin and u >= 1: a(fin.pop(0))
    for x in fin: a(x)
    a("v_pk_fma_f32 v[20:21], v[54:55], v[36:37], v[20:21] op_sel_hi:[1,0,1] neg_lo:[1,0,0] neg_hi:[1,0,0]")
    a("v_pk_fma_f32 v[22:23], v[56:57], v[36:37], v[22:23] op_sel_hi:[1,0,1] neg_lo:[1,0,0] neg_hi:[1,0,0]")
    a("v_pk_mul_f32 v[20:21], v[20:21], v[36:37] op_sel:[0,1] op_sel_hi:[1,1]")
    a("v_pk_mul_f32 v[22:23], v[22:23], v[36:37] op_sel:[0,1] op_sel_hi:[1,1]")
    rnd2(20, 21, 24); rnd2(22, 23, 25)
    a("s_cmp_eq_u32 s65, 0")
    a("s_cselect_b32 exec_lo, 0, 0x000f000f"); a("s_cselect_b32 exec_hi, 0x000f000f, 0")
    pack_gran(24, 20)
    lstore("buffer_store_dwordx4 v[24:27], v62, s[32:35], s70 offen", "E")
    FULL()
    stamp(10)
    if cfg.hintD == "send": a("v_lshlrev_b32 v38, 4, v1"); a("v_mov_b32 v243, v6"); notice(0, 240, 0x400)
    def e_between():
        a("s_mov_b32 s52, 0x22222222"); a("s_mov_b32 s53, 0x22222222")
        a("s_mov_b32 s54, 0x44444444"); a("s_mov_b32 s55, 0x44444444")
        a("s_mov_b32 s56, 0x88888888"); a("s_mov_b32 s57, 0x88888888")
        a("s_cmp_eq_u32 s65, 0"); a("s_cselect_b64 s[58:59], 0, -1")
        a("v_cndmask_b32 v34, v20, v21, s[52:53]"); a("v_cndmask_b32 v34, v34, v22, s[54:55]"); a("v_cndmask_b32 v34, v34, v23, s[56:57]")
        for r in range(4): a(f"v_mov_b32 v{20+r}, 0")
        for ck in range(9):
            if ck % 3 == 0: wait_prog_s(218 + 4*(ck+3))
            a(f"ds_read_b64_tr_b16 v[{64+4*ck}:{65+4*ck}], v47 offset:{4096*ck}")
            a(f"ds_read_b64_tr_b16 v[{66+4*ck}:{67+4*ck}], v48 offset:{4096*ck}")
    ES = [100, 104, 108][:cfg.esets]
    rolling(len(ES), 1, lambda k: a(f"buffer_load_dwordx4 v[{ES[k]}:{ES[k]+3}], v44, s[32:35], s69 offen sc1"),
            lambda k: chk([ES[k]], 35),
            lambda k: (a(f"v_mov_b32 v24, v{ES[k]}"), a(f"v_mov_b32 v25, v{ES[k]+1}"), a(f"v_mov_b32 v26, v{ES[k]+2}")), between=e_between)
    stamp(11)
    unpack_b(28, 24)
    a("v_cndmask_b32 v35, v24, v28, s[52:53]"); a("v_cndmask_b32 v35, v35, v25, s[54:55]"); a("v_cndmask_b32 v35, v35, v26, s[56:57]")
    a("v_and_b32 v35, 0xffff0000, v35")
    a("v_cndmask_b32 v36, v34, v35, s[58:59]")
    a("v_cndmask_b32 v37, v35, v34, s[58:59]")
    a("v_mul_f32 v38, v36, v36"); a("v_mov_b32 v39, 1.0"); a("v_fmac_f32 v39, 0x3d372713, v38")
    a("v_mul_f32 v39, v39, v36")
    a("v_mul_f32 v39, 0xc0135761, v39")
    a("v_exp_f32 v39, v39"); a("v_add_f32 v39, 1.0, v39"); a("v_rcp_f32 v39, v39"); a("v_mul_f32 v39, v39, v36")
    rnd1(39, 38)
    a("v_mul_f32 v39, v39, v37"); a("v_cvt_pk_bf16_f32 v39, v39, v39")
    a("s_cmp_eq_u32 s65, 0")
    a("s_cselect_b32 exec_lo, 0x000f000f, 0"); a("s_cselect_b32 exec_hi, 0, 0x000f000f")
    a(f"ds_write_b16 v45, v39 offset:{O_HH}")
    a("s_mov_b32 s52, 0x00010001"); a("s_mov_b32 s53, 0x00010001")
    a("s_waitcnt lgkmcnt(0)")
    FULL()
    a("s_barrier")
    a(f"ds_read_b128 v[24:27], v42 offset:{O_HH}")
    a("v_mov_b32 v43, v6")
    a("s_waitcnt lgkmcnt(0)")
    for ck in range(9):
        B = 28 + 4*(ck & 1)
        for r in range(4): a(f"v_cndmask_b32 v{B+r}, 0, v{24+r}, s[52:53]")
        if ck < 8: a("s_lshl_b64 s[52:53], s[52:53], 1")
        a(f"v_mfma_f32_16x16x32_bf16 v[20:23], v[{64+4*ck}:{67+4*ck}], v[{B}:{B+3}], v[20:23]")
    a("s_mov_b32 exec_lo, 0x01ff01ff"); a("s_mov_b32 exec_hi, 0x01ff01ff")
    a("v_perm_b32 v40, v20, v21, s60"); a("v_perm_b32 v41, v22, v21, s61"); a("v_perm_b32 v42, v23, v21, s62")
    a("buffer_store_dwordx4 v[40:43], v46, s[32:35], s68 offen sc1")
    FULL()

    a("L_fin:")
    if cfg.debug:
        a("s_memrealtime s[96:97]")
        a("s_getreg_b32 s71, hwreg(HW_REG_XCC_ID)")
        a("s_waitcnt lgkmcnt(0) vmcnt(0)")
        a("s_mov_b64 exec, -1")
        a("s_mov_b32 s98, s46")
        srd(44, 26, W_SIZE + 0x100000)
        for k in range(12): a(f"v_mov_b32 v{20+k}, s{72+2*k}")
        a("v_mov_b32 v32, s96"); a("v_mov_b32 v33, s71"); a("v_mov_b32 v34, s50"); a("v_mov_b32 v35, s98")
        a("s_mul_i32 s51, s2, 5"); a("s_add_u32 s51, s51, s3"); a("s_lshl_b32 s51, s51, 6"); a(f"s_add_u32 s51, s51, {W_STAMP}")
        a("v_mov_b32 v14, 0")
        a("s_mov_b64 exec, 1")
        for k in range(4): a(f"buffer_store_dwordx4 v[{20+4*k}:{23+4*k}], v14, s[44:47], s51 offen offset:{16*k}")
    a("s_waitcnt vmcnt(0)")
    a("L_end:")
    a("s_endpgm")
    body = a.text()
    nbytes_est = 0
    head = f"""; sequential pre-LN decode layer: LN -> q -> sliding-window GQA attention -> wo -> LN -> GeGLU FFN
; @launch grid=(256,1,1) block=(320,1,1) lds={LDS_BYTES}
.amdgcn_target "amdgcn-amd-amdhsa--gfx950"
.set CODE_KB, {cfg.code_kb if hasattr(cfg, 'code_kb') else 14}
.set CODE_BYTES, {cfg.code_bytes if hasattr(cfg, 'code_bytes') else 8192}
.text
.globl {NAME}
.p2align 8
.type {NAME},@function
{NAME}:
"""
    tail = '.section .rodata,"a"\n.p2align 6\n' + KD.format(name=NAME, vgpr=256, sgpr=100, accum=256)
    return head + body + tail

if __name__ == "__main__":
    dbg = "debug" in sys.argv
    s = gen(Cfg(debug=dbg))
    out = sys.argv[1] if len(sys.argv) > 1 else "sequential_preLN__sliding_block_cached__glu_gated_geglu__decode.s"
    open(out, "w").write(s)
    print("wrote", out, len(s), "bytes")
```
